```python
import torch

def _softmax(x, axis=-1):
    return torch.softmax(x, dim=axis)
def _gelu(x):
    return torch.nn.functional.gelu(x, approximate="tanh")
def _silu(x):
    return torch.nn.functional.silu(x)
def _sigmoid(x):
    return torch.sigmoid(x)
def _layernorm(x, axis=-1, eps=1e-5):
    m = x.mean(dim=axis, keepdim=True)
    v = x.var(dim=axis, keepdim=True, unbiased=False)
    return (x - m) / torch.sqrt(v + eps)
def _scatter_add(tgt, idx, src, axis=0):
    return tgt.clone().index_add_(axis, idx, src)
def _segment_sum(src, seg, n):
    out = torch.zeros((n,) + src.shape[1:], dtype=src.dtype)
    return out.index_add_(0, seg, src)
def _pad(x, pw):
    flat = tuple(v for pair in reversed(pw) for v in pair)
    return torch.nn.functional.pad(x, flat)

kernel_name = 'gated_mix__ssm_conv_s5__mixer_channel_mlp__prompt'

def setup_inputs():

    _w = (lambda a: (lambda t: t.to(torch.bfloat16) if t.is_floating_point() else t)(torch.as_tensor(a)))
    def _A_setup():
        B, S, D = 1, 2048, 512
        P = D
        Lambda_re = -0.5 * (lambda _x: torch.exp(torch.as_tensor(_x)))((lambda *s: torch.randn(*s, dtype=torch.bfloat16) * 0.4)(P))
        Lambda_im = (lambda *s: torch.randn(*s, dtype=torch.bfloat16) * 0.8)(P) * 1.0
        B_re = (lambda *s: torch.randn(*s, dtype=torch.bfloat16) * 0.8)(P, D) * (D ** -0.5)
        B_im = (lambda *s: torch.randn(*s, dtype=torch.bfloat16) * 0.8)(P, D) * (D ** -0.5)
        C_re = (lambda *s: torch.randn(*s, dtype=torch.bfloat16) * 0.8)(D, P) * (P ** -0.5)
        C_im = (lambda *s: torch.randn(*s, dtype=torch.bfloat16) * 0.8)(D, P) * (P ** -0.5)
        log_dt = (lambda *s: torch.randn(*s, dtype=torch.bfloat16) * 0.4)(P) * 0.3 - 2.0
        Dskip = (lambda *s: torch.randn(*s, dtype=torch.bfloat16) * 0.1)(D)
        return {
            "x": _w((lambda *s: torch.randn(*s, dtype=torch.bfloat16) * 0.05)(B, S, D)),
            "Lambda_re": _w(Lambda_re),
            "Lambda_im": _w(Lambda_im),
            "B_re": _w(B_re),
            "B_im": _w(B_im),
            "C_re": _w(C_re),
            "C_im": _w(C_im),
            "log_dt": _w(log_dt),
            "Dskip": _w(Dskip),
        }
    _A_in = _A_setup()

    def _B_setup():
        B, S, D, F = 1, 2048, 512, 1376
        return {
            "x": _w((lambda *s: torch.randn(*s, dtype=torch.bfloat16) * 0.05)(B, S, D)),
            "w1": _w((lambda *s: torch.randn(*s, dtype=torch.bfloat16) * 0.8)(D, F) * (D ** -0.5)),
            "b1": _w((lambda *s: torch.randn(*s, dtype=torch.bfloat16) * 0.4)(F)),
            "w2": _w((lambda *s: torch.randn(*s, dtype=torch.bfloat16) * 0.05)(F, D) * (F ** -0.5)),
            "b2": _w((lambda *s: torch.randn(*s, dtype=torch.bfloat16) * 0.05)(D)),
        }
    _B_in = _B_setup()

    return {
        "A_x": _A_in["x"],
        "A_Lambda_re": _A_in["Lambda_re"],
        "A_Lambda_im": _A_in["Lambda_im"],
        "A_B_re": _A_in["B_re"],
        "A_B_im": _A_in["B_im"],
        "A_C_re": _A_in["C_re"],
        "A_C_im": _A_in["C_im"],
        "A_log_dt": _A_in["log_dt"],
        "A_Dskip": _A_in["Dskip"],
        "B_x": _B_in["x"],
        "B_w1": _B_in["w1"],
        "B_b1": _B_in["b1"],
        "B_w2": _B_in["w2"],
        "B_b2": _B_in["b2"],
        "gate_w": _w((lambda *s: torch.randn(*s, dtype=torch.bfloat16) * 0.05)(512) * 16.0),
    }

def reference(A_x, A_Lambda_re, A_Lambda_im, A_B_re, A_B_im, A_C_re, A_C_im, A_log_dt, A_Dskip, B_x, B_w1, B_b1, B_w2, B_b2, gate_w):
    def _A_ref(x, Lambda_re, Lambda_im, B_re, B_im, C_re, C_im, log_dt, Dskip):
        Bsz, L, H = x.shape
        Lam = Lambda_re + 1j * Lambda_im
        Bmat = B_re + 1j * B_im
        Cmat = C_re + 1j * C_im
        dt = torch.exp(log_dt)
        Lam_bar = torch.exp(dt * Lam)
        B_bar = ((Lam_bar - 1.0) / Lam)[:, None] * Bmat
        Bu = torch.einsum("bld,pd->blp", x + 0j, B_bar)
        h = torch.zeros_like(Bu[:, 0, :])
        hs = []
        for t in range(L):
            h = Lam_bar[None, :] * h + Bu[:, t, :]
            hs.append(h)
        hseq = torch.stack(hs, 1)
        y = 2.0 * torch.einsum("blp,dp->bld", hseq, Cmat).real + x * Dskip[None, None, :]
        return y

    def _B_ref(x, w1, b1, w2, b2):
        y = _layernorm(x, axis=-1)
        h = _gelu(torch.einsum("bsd,df->bsf", y, w1) + b1)
        return torch.einsum("bsf,fd->bsd", h, w2) + b2

    x = A_x
    g = _sigmoid((x * gate_w).sum(-1, keepdims=True))
    a = _A_ref(x, A_Lambda_re, A_Lambda_im, A_B_re, A_B_im, A_C_re, A_C_im, A_log_dt, A_Dskip)
    b = _B_ref(x, B_w1, B_b1, B_w2, B_b2)
    return g * a + (1 - g) * b
```

```python
HEADER_COMMENT = open('gated_mix__ssm_conv_s5__mixer_channel_mlp__prompt.s.ref').read().split('; Override launch')[0]
KA = dict(x=0, lre=8, lim=16, bre=24, bim=32, cre=40, cim=48, logdt=56, dskip=64, bx=72, w1=80, b1=88, w2=96, b2=104, gw=112, out=120, dbg=128, ws=136)

class Asm:
    def __init__(self):
        self.L = []
        self.nlab = 0
    def __call__(self, s=''):
        for line in s.split('\n'):
            line = line.strip()
            if line: self.L.append('    ' + line if not line.endswith(':') else line)
    def label(self, base='L'):
        self.nlab += 1
        return '%s_%d' % (base, self.nlab)
    def text(self):
        return '\n'.join(self.L) + '\n'

def kernel_text(name, body, vgpr, sgpr=102, accum=None):
    if accum is None: accum = min(256, (vgpr + 3)//4*4)
    t = '.text\n.globl %s\n.p2align 8\n.type %s,@function\n%s:\n' % (name, name, name)
    t += body
    d = '.amdhsa_kernel %s\n  .amdhsa_next_free_vgpr %d\n  .amdhsa_next_free_sgpr %d\n  .amdhsa_accum_offset %d\n' % (name, vgpr, sgpr, accum)
    d += '  .amdhsa_group_segment_fixed_size 0\n  .amdhsa_kernarg_size 144\n  .amdhsa_user_sgpr_count 2\n  .amdhsa_user_sgpr_kernarg_segment_ptr 1\n  .amdhsa_system_sgpr_workgroup_id_x 1\n'
    d += '  .amdhsa_float_denorm_mode_32 3\n.end_amdhsa_kernel\n'
    return t, d

def file_text(launches, kernels):
    s = HEADER_COMMENT
    for (n, g, b, lds) in launches:
        s += '; @launch kernel=%s grid=(%d,1,1) block=(%d,1,1) lds=%d\n' % (n, g, b, lds)
    s += '.amdgcn_target "amdgcn-amd-amdhsa--gfx950"\n'
    for t, d in kernels: s += t
    s += '.section .rodata,"a"\n'
    for t, d in kernels: s += '.p2align 6\n' + d
    return s

def srd(a, d, base, nbytes):
    a('s_mov_b32 s%d, s%d' % (d, base))
    a('s_and_b32 s%d, s%d, 0xffff' % (d+1, base+1))
    a('s_mov_b32 s%d, 0x%x' % (d+2, nbytes))
    a('s_mov_b32 s%d, 0x20000' % (d+3))

STAMP_OFF = 200 << 20
def stamp_store(a, nst, sbase, ws_lo, wg_s, vt=0, koff=0):
    a('s_waitcnt lgkmcnt(0)')
    a('s_mov_b64 exec, 1')
    a('s_lshl_b32 s100, s%d, 7' % wg_s)
    a('s_add_u32 s100, s100, 0x%x' % (STAMP_OFF + koff))
    a('v_mov_b32 v%d, s100' % vt)
    for i in range(nst):
        a('v_mov_b32 v%d, s%d' % (vt+2, sbase+2*i))
        a('v_mov_b32 v%d, s%d' % (vt+3, sbase+2*i+1))
        a('global_store_dwordx2 v%d, v[%d:%d], s[%d:%d] offset:%d' % (vt, vt+2, vt+3, ws_lo, ws_lo+1, 8*i))
        a('s_nop 1')
    a('s_waitcnt vmcnt(0)')
```

```python
from gen import *
WRB = 36864
def setupB(a, V, cfg, E):
    t, vL, vN, vH, vRp, vCq, vBs = (E[k] for k in ('t','vL','vN','vH','vRp','vCq','vBs'))
    srd = E['srd']
    B = {}
    srd(rCre, P['cre'], 512*1024); srd(rCim, P['cim'], 512*1024); srd(rW2, P['w2'], 1376*1024); srd(rOut, P['out'], 2048*2048)
    vC4 = V.alloc('c4', 2); vW4 = V.alloc('w4', 4); vRdC = V.alloc('rdC', 4); vT2 = V.alloc('t2', 2)
    a('s_mul_i32 s10, s%d, %d\ns_add_u32 s%d, s10, %d' % (sW, WRB, sLX, SB))
    a('s_and_b32 s%d, s%d, 7' % (sLW, sJ))
    a('s_lshl_b32 s10, s%d, 16\ns_lshl_b32 s11, s%d, 8\ns_add_u32 s%d, s10, s11' % (sLW, sW, sOX))
    a('s_mul_i32 s10, s%d, 22\ns_lshr_b32 s11, s%d, 1\ns_and_b32 s11, s11, s%d\ns_sub_u32 s%d, s10, s11' % (sW, sW, sW, sOW))
    a('s_lshl_b32 s10, s%d, 14\ns_lshl_b32 s11, s%d, 7\ns_add_u32 s%d, s10, s11' % (sOW, sLW, sOB))
    a('v_add_u32 v%d, 14336, v%d\nv_add_u32 v%d, 14336, v%d' % (vC4, vBs, vC4+1, vBs+1))
    a('v_lshrrev_b32 v%d, 3, v%d\nv_and_b32 v%d, 7, v%d\nv_bfe_u32 v%d, v%d, 4, 1\nv_lshlrev_b32 v%d, 2, v%d\nv_xor_b32 v%d, v%d, v%d' % (t, vL, t+1, vL, t+2, vL, t+2, t+2, t+1, t+1, t+2))
    a('v_lshlrev_b32 v%d, 4, v%d\nv_lshl_add_u32 v%d, v%d, 10, v%d' % (t+1, t+1, vW4, t, t+1))
    for q in range(1, 4): a('v_add_u32 v%d, %d, v%d' % (vW4+q, 7168*q, vW4))
    a('v_lshrrev_b32 v%d, 1, v%d\nv_and_b32 v%d, 7, v%d\nv_xor_b32 v%d, v%d, v%d\nv_lshlrev_b32 v%d, 4, v%d\nv_lshl_add_u32 v%d, v%d, 7, v%d' % (t, vN, t, t, t, t, vH, t, t, t, vN, t))
    a('v_add_u32 v%d, s%d, v%d' % (vRdC, sLX, t))
    for s in range(1, 4): a('v_xor_b32 v%d, %d, v%d' % (vRdC+s, s << 5, vRdC))
    a('v_bfe_u32 v%d, v%d, 2, 2\nv_lshl_add_u32 v%d, v%d, 2, v%d' % (t, vL, t, vH, t))
    a('v_bfe_u32 v%d, v%d, 4, 1\nv_bfe_u32 v%d, v%d, 1, 1\nv_lshl_add_u32 v%d, v%d, 1, v%d' % (t+1, vL, t+2, vL, t+1, t+1, t+2))
    a('v_bfe_u32 v%d, v%d, 3, 1\nv_lshl_add_u32 v%d, v%d, 2, v%d\nv_lshlrev_b32 v%d, 4, v%d' % (t+2, vL, t+1, t+2, t+1, t+1, t+1))
    a('v_and_b32 v%d, 1, v%d\nv_lshl_add_u32 v%d, v%d, 3, v%d\nv_lshl_add_u32 v%d, v%d, 7, v%d' % (t+2, vL, t+1, t+2, t+1, t, t, t+1))
    a('v_add_u32 v%d, s%d, v%d\nv_xor_b32 v%d, 64, v%d' % (vT2, sLX, t, vT2+1, vT2))
    B.update(vC4=vC4, vW4=vW4, vRdC=vRdC, vT2=vT2)
    def c_dma():
        out = []
        src = [vBs, vBs+1, vC4, vC4+1]
        for cc in range(2):
            for part, r in enumerate((rCre, rCim)):
                for hq in range(2):
                    out.append(('s', 's_add_u32 m0, s%d, %d\ns_add_u32 s7, s%d, %d' % (sLX, (2*cc+part)*8192 + 4096*hq, sOX, 128*cc + 32768*hq)))
                    for q in range(4):
                        out.append(('v', 'buffer_load_dwordx4 v%d, s[%d:%d], s7 offen offset:%d lds' % (src[q], r, r+3, 1024*q)))
        return out
    def w_dma(pair, ldsoff, base=sLX):
        out = [('s', 's_add_u32 m0, s%d, %d\ns_add_u32 s7, s%d, %d' % (base, ldsoff, sOB, 32768*pair))]
        for q in range(4):
            out.append(('v', 'buffer_load_dwordx4 v%d, s[%d:%d], s7 offen offset:%d lds' % (vW4+q, rW2, rW2+3, 1024*q)))
        return out
    B.update(c_dma=c_dma, w_dma=w_dma)
    return B

def emit(a, lst, tag):
    for k, s in lst:
        if k == 's': a(s)
        else: a.vmem(s, tag)

def round1_reads(a, B):
    vRdC, vT2 = B['vRdC'], B['vT2']
    for sl in range(4):
        for q4 in range(4):
            for nt in range(2):
                cc, s1, part, sub = sl >> 1, sl & 1, q4 >> 1, q4 & 1
                a('ds_read_b128 %s, v%d offset:%d' % (ar(((sl*4+q4)*2+nt)*4, 4), vRdC+2*s1+sub, (2*cc+part)*8192 + 4096*nt))
    for u in range(2):
        for nt in range(2):
            for hf in range(2):
                a('ds_read_b64_tr_b16 %s, v%d offset:%d' % (ar(128+8*u+4*nt+2*hf, 2), vT2+nt, 32768 + 2048*u + 1024*hf))

def phaseB(a, V, cfg, E, B):
    t, vL, vN, vH, vL16, stamp, check = (E[k] for k in ('t','vL','vN','vH','vL16','stamp','check'))
    vT2 = B['vT2']
    DB = cfg.get('depthB', 12)
    acc = V.alloc('accB', 64, 4); buf = V.alloc('bufB', 8*DB, 4)
    gl = V.alloc('gl', 2); fl = V.alloc('fl'); vFa = V.alloc('fa')
    xe = V.alloc('xe', 8, 2); ge = V.alloc('ge', 4); dk = V.alloc('dk', 2); b2 = V.alloc('b2r', 2); vOa = V.alloc('oa', 4); vGa = V.alloc('ga')
    sA0, sA1, sTB = 99, 100, 101
    a('s_lshl_b32 s10, s%d, 1\ns_lshr_b32 s11, s%d, 3\ns_add_u32 s%d, s10, s11' % (sI, sJ, sTB))
    a('s_mul_i32 s10, s%d, %d\ns_lshl_b32 s11, s%d, 14\ns_add_u32 s%d, s10, s11\ns_add_u32 s%d, s%d, %d' % (sTB, 2*NKS*1024, sW, sA0, sA1, sA0, NKS*1024))
    a('v_and_b32 v%d, 15, v%d\nv_lshlrev_b32 v%d, 2, v%d\ns_lshl_b32 s10, s%d, 7\ns_add_u32 s12, s10, 0x%x' % (vFa, vL, vFa, vFa, sI, WS_DONE))
    a('v_lshlrev_b32 v%d, 2, v%d\nv_and_b32 v%d, 16, v%d\nv_and_b32 v%d, 1, v%d\nv_lshl_add_u32 v%d, v%d, 3, v%d' % (t, vN, t, t, t+1, vN, t, t+1, t))
    a('v_bfe_u32 v%d, v%d, 1, 1\nv_lshrrev_b32 v%d, 3, v%d\nv_lshl_add_u32 v%d, v%d, 1, v%d\nv_add_lshl_u32 v%d, v%d, v%d, 4' % (t+1, vN, t+2, vN, t+1, t+2, t+1, vGa, t, t+1))
    a('v_bfe_u32 v%d, v%d, 4, 1\nv_lshlrev_b32 v%d, 3, v%d\nv_add_u32 v%d, v%d, v%d' % (t, vL, t, t, t, t, vH))
    a('s_lshr_b32 s10, s%d, 1\ns_lshl_b32 s10, s10, 5\ns_and_b32 s11, s%d, 1\ns_lshl_b32 s11, s11, 2\ns_add_u32 s10, s10, s11\ns_lshl_b32 s11, s%d, 6\ns_add_u32 s10, s10, s11' % (sW, sW, sTB))
    a('v_add_u32 v%d, s10, v%d' % (t, t))
    for it in range(4): a('v_add_u32 v%d, %d, v%d' % (vOa+it, 16*(it & 1) + 2*(it >> 1), t))
    a('v_lshlrev_b32 v%d, 1, v%d\ns_lshl_b32 s13, s%d, 7\nv_add_u32 v%d, s13, v%d' % (t+1, vFa, sLW, t+1, t+1))
    rest = B['rest']
    npoll = cfg.get('npoll', 15)
    emit(a, rest[:len(rest)-npoll], 'r2')
    poll = ['buffer_load_dword v%d, v%d, s[%d:%d], s12 offen sc1' % (fl, vFa, rWS, rWS+3)]
    a.vmem(poll[0], 'poll')
    emit(a, rest[len(rest)-npoll:], 'r2')
    a.vmem('global_load_dwordx2 %s, v%d, s[%d:%d]' % (vr(dk,2), t+1, P['dskip'], P['dskip']+1), 'ep')
    a.vmem('global_load_dwordx2 %s, v%d, s[%d:%d]' % (vr(b2,2), t+1, P['b2'], P['b2']+1), 'ep')
    for it in range(4):
        a('v_lshl_add_u32 v%d, v%d, 10, v%d' % (t+2+it, vOa+it, t+1))
        a.vmem('buffer_load_dwordx2 %s, v%d, s[%d:%d], 0 offen' % (vr(xe+2*it,2), t+2+it, rX, rX+3), 'ep')
    stamp('r2iss')
    a.vm_wait('poll')
    c, br = check(poll, [(fl, sNR)], t+6)
    a(c); br()
    stamp('flags')
    a('s_lshl_b32 s10, s%d, 10\ns_add_u32 s10, s10, 0x%x\ns_mov_b32 s11, 0x%x' % (sTB, WS_STATS+8, WS_STATS+8))
    NK = 38
    def issueA(kk):
        b = buf + 8*(kk % DB)
        rel = kk if kk < 16 else kk-16
        if kk == 16:
            a('s_lshl_b32 s13, s%d, 4\ns_sub_u32 s13, s%d, s13\ns_add_u32 s13, s13, 64-12\ns_lshl_b32 s13, s13, 10\ns_add_u32 s%d, s%d, s13\ns_add_u32 s%d, s%d, s13' % (sW, sOW, sA0, sA0, sA1, sA1))
        elif kk and rel % 4 == 0:
            a('s_add_u32 s%d, s%d, 4096\ns_add_u32 s%d, s%d, 4096' % (sA0, sA0, sA1, sA1))
        a.vmem('buffer_load_dwordx4 %s, v%d, s[%d:%d], s%d offen offset:%d sc1' % (vr(b,4), vL16, rWS, rWS+3, sA0, 1024*(rel % 4)), 'A%d' % kk)
        a.vmem('buffer_load_dwordx4 %s, v%d, s[%d:%d], s%d offen offset:%d sc1' % (vr(b+4,4), vL16, rWS, rWS+3, sA1, 1024*(rel % 4)), 'A%d' % kk)
    for kk in range(2): issueA(kk)
    for mt in range(2):
        a.vmem('buffer_load_dword v%d, v%d, s[%d:%d], s10 offen offset:%d sc1' % (gl+mt, vGa, rWS, rWS+3, 512*mt), 'g')
    for it in range(4):
        a('v_lshlrev_b32 v%d, 4, v%d' % (t+2+it, vOa+it))
        a.vmem('buffer_load_dword v%d, v%d, s[%d:%d], s11 offen sc1' % (ge+it, t+2+it, rWS, rWS+3), 'g')
    for kk in range(2, DB): issueA(kk)
    def wfrag(kk, nt):
        if kk < 18: return ar((kk*2+nt)*4, 4)
        return ar(144 + 8*(kk % 2) + 4*nt, 4)
    def wread(kk):
        u = kk-16
        o = []
        if u == 20:
            o.append('s_lshl_b32 s13, s%d, 12\ns_sub_u32 s13, s%d, s13\nv_subrev_u32 v%d, s13, v%d\nv_subrev_u32 v%d, s13, v%d' % (sW, sLX, vT2, vT2, vT2+1, vT2+1))
        off = 2048*(u-2) if u < 20 else 2048*(u-20)
        for nt in range(2):
            for hf in range(2):
                o.append('ds_read_b64_tr_b16 %s, v%d offset:%d' % (ar(144+8*(kk % 2)+4*nt+2*hf, 2), vT2+nt, off+1024*hf))
        return o
    Lsk = a.lab('sk37')
    for kk in range(NK):
        a.vm_wait('A%d' % kk, lgkm=(kk >= 18 or kk == 0))
        if kk == 0: stamp('A0')
        if kk == 16:
            for mt in range(2): a('v_lshlrev_b32 v%d, 16, v%d' % (gl+mt, gl+mt))
            for nt in range(2):
                for mt in range(2):
                    for q in range(8):
                        r = vr(acc+(nt*2+mt)*16+2*q, 2)
                        a('v_pk_mul_f32 %s, %s, %s op_sel:[0,%d] op_sel_hi:[1,%d]' % (r, r, vr(gl,2), mt, mt))
        if kk == NK-1: a('s_cmp_ge_u32 s%d, 2\ns_cbranch_scc1 %s' % (sW, Lsk))
        rd = wread(kk+1) if 18 <= kk+1 < NK else []
        b = buf + 8*(kk % DB)
        for i4 in range(4):
            nt, mt = i4 >> 1, i4 & 1
            d = vr(acc+(nt*2+mt)*16, 16)
            a('v_mfma_f32_32x32x16_bf16 %s, %s, %s, %s' % (d, wfrag(kk, nt), vr(b+4*mt, 4), '0' if kk == 0 else d))
            if i4 == 0:
                for x in rd: a(x)
        if kk + DB < NK: issueA(kk+DB)
    a('%s:' % Lsk)
    stamp('Bmain')
    a('v_and_b32 v%d, 7, v%d\nv_xor_b32 v%d, v%d, v%d\nv_lshlrev_b32 v%d, 4, v%d\nv_lshl_add_u32 v%d, v%d, 8, v%d\nv_add_u32 v%d, s%d, v%d' % (t, vN, t, t, vH, t, t, t, vN, t, t, sLX, t))
    for g in range(1, 4): a('v_xor_b32 v%d, %d, v%d' % (t+g, 32*g, t))
    ec = buf
    for k in range(2):
        a('v_lshlrev_b32 v%d, 16, v%d\nv_and_b32 v%d, 0xffff0000, v%d' % (ec+2*k, dk+k, ec+2*k+1, dk+k))
        a('v_lshlrev_b32 v%d, 16, v%d\nv_and_b32 v%d, 0xffff0000, v%d' % (ec+4+2*k, b2+k, ec+4+2*k+1, b2+k))
    for nt in range(2):
        for mt in range(2):
            for g in range(4):
                a('ds_write_b128 v%d, %s offset:%d' % (t+g, vr(acc+(nt*2+mt)*16+4*g, 4), 8192*mt + 128*nt))
    ex = buf+8
    for it in range(4):
        e = ex+4*it
        for k in range(2):
            a('v_lshlrev_b32 v%d, 16, v%d\nv_and_b32 v%d, 0xffff0000, v%d' % (e+2*k, xe+2*it+k, e+2*k+1, xe+2*it+k))
        for k in range(2): a('v_pk_mul_f32 %s, %s, %s' % (vr(e+2*k,2), vr(e+2*k,2), vr(ec+2*k,2)))
        for k in range(2): a('v_cvt_pk_bf16_f32 v%d, v%d, v%d' % (xe+2*it+k, e+2*k, e+2*k+1))
        a('v_lshlrev_b32 v%d, 16, v%d\nv_and_b32 v%d, 0xffff0000, v%d' % (gl, ge+it, gl+1, ge+it))
        for k in range(2):
            a('v_lshlrev_b32 v%d, 16, v%d\nv_and_b32 v%d, 0xffff0000, v%d' % (e+2*k, xe+2*it+k, e+2*k+1, xe+2*it+k))
        for k in range(2): a('v_pk_mul_f32 %s, %s, %s op_sel_hi:[1,0]' % (vr(e+2*k,2), vr(e+2*k,2), vr(gl,2)))
        for k in range(2): a('v_pk_fma_f32 %s, %s, %s, %s op_sel:[0,1,0] op_sel_hi:[1,1,1]' % (vr(e+2*k,2), vr(ec+4+2*k,2), vr(gl,2), vr(e+2*k,2)))
    a('v_lshrrev_b32 v%d, 4, v%d\nv_and_b32 v%d, 15, v%d\nv_xor_b32 v%d, v%d, v%d\nv_lshlrev_b32 v%d, 4, v%d\nv_lshl_add_u32 v%d, v%d, 8, v%d' % (t+4, vL, t+5, vL, t+5, t+5, t+4, t+5, t+5, t+4, t+4, t+5))
    a('s_lshl_b32 s10, s%d, 12\ns_add_u32 s10, s10, %d\nv_add_u32 v%d, s10, v%d\nv_xor_b32 v%d, 64, v%d' % (sW, SB, t+4, t+4, t+5, t+4))
    a('v_add_u32 v%d, %d, v%d\nv_add_u32 v%d, %d, v%d' % (t+6, 2*WRB, t+4, t+7, 2*WRB, t+5))
    a('s_lshl_b32 s13, s%d, 8\nv_lshl_add_u32 v%d, v%d, 2, s13' % (sLW, vFa, vFa))
    for it in range(4): a('v_lshl_add_u32 v%d, v%d, 11, v%d' % (vOa+it, vOa+it, vFa))
    a('s_waitcnt lgkmcnt(0)\ns_barrier')
    stamp('red')
    pr = buf+24
    for it in range(4):
        for p in range(4):
            a('ds_read_b128 %s, v%d offset:%d' % (vr(pr+16*it+4*p, 4), t+4+(it & 1)+2*(p >> 1), 1024*it + WRB*(p & 1)))
    for it in range(4):
        a('s_waitcnt lgkmcnt(%d)' % (12-4*it))
        e = ex+4*it; p0 = pr+16*it
        for k in range(2): a('v_pk_add_f32 %s, %s, %s' % (vr(p0+2*k,2), vr(p0+2*k,2), vr(p0+4+2*k,2)))
        for k in range(2): a('v_pk_add_f32 %s, %s, %s' % (vr(p0+8+2*k,2), vr(p0+8+2*k,2), vr(p0+12+2*k,2)))
        for k in range(2): a('v_pk_add_f32 %s, %s, %s' % (vr(e+2*k,2), vr(e+2*k,2), vr(p0+2*k,2)))
        for k in range(2): a('v_pk_add_f32 %s, %s, %s' % (vr(e+2*k,2), vr(e+2*k,2), vr(p0+8+2*k,2)))
        a.vmem('buffer_store_dwordx4 %s, v%d, s[%d:%d], 0 offen' % (vr(e,4), vOa+it, rOut, rOut+3), 'out')
```

```python
import re
REG = re.compile(r'^(-|abs\(|neg\()?([vas])(\d+)\)?$')
RNG = re.compile(r'^(-)?([vas])\[(\d+):(\d+)\]$')
TRANS = ('v_exp_f32','v_log_f32','v_rcp_f32','v_rsq_f32','v_sqrt_f32','v_sin_f32','v_cos_f32','v_rcp_iflag_f32')
def regs(op):
    op = op.strip()
    m = REG.match(op)
    if m: return {(m.group(2), int(m.group(3)))}
    m = RNG.match(op)
    if m: return {(m.group(2), i) for i in range(int(m.group(3)), int(m.group(4))+1)}
    if op == 'vcc': return {('s','vcc_lo'),('s','vcc_hi')}
    if op in ('vcc_lo','vcc_hi'): return {('s',op)}
    if op == 'exec': return {('s','exec')}
    if op == 'm0': return {('s','m0')}
    return set()
class I:
    def __init__(self, text):
        self.text = text
        t = text.split(';')[0].strip()
        self.label = t.endswith(':')
        self.directive = t.startswith('.')
        self.mn = ''
        self.dst = set(); self.src = set(); self.srcC = set(); self.srcAB=set(); self.stdata=set()
        self.ws = 0
        if self.label or self.directive or not t: return
        p = t.split(None, 1)
        mn = p[0]; self.mn = mn
        rest = p[1] if len(p) > 1 else ''
        ops = [o.strip() for o in re.split(r',(?![^\[]*\])', rest)] if rest else []
        mods = ''
        if ops:
            sp = ops[-1].split()
            ops[-1] = sp[0] if sp else ''
            mods = ' '.join(sp[1:])
        self.ops = ops; self.mods = mods
        self.ws = 1
        base = re.sub(r'_(e32|e64|dpp|sdwa)$', '', mn)
        self.base = base
        self.mfma = mn.startswith('v_mfma')
        self.valu = mn.startswith('v_') and not self.mfma
        self.trans = base in TRANS
        self.dot = mn.startswith('v_dot')
        self.dpp = mn.endswith('_dpp') or 'row_' in mods or 'quad_perm' in mods
        self.perml = mn.startswith('v_permlane')
        self.vmem = mn.startswith('buffer_') or mn.startswith('global_')
        self.ds = mn.startswith('ds_')
        self.salu = mn.startswith('s_')
        self.lds_dma = self.vmem and (' lds' in (' '+mods) or 'load_lds' in mn)
        if mn == 's_nop': self.ws = int(ops[0], 0) + 1
        R = [regs(o) for o in ops]
        if self.mfma:
            self.dst = R[0]; self.srcAB = R[1] | R[2]; self.srcC = R[3]; self.src = self.srcAB | self.srcC
            self.passes = 8 if '32x32x16' in mn else 4
        elif self.valu:
            self.dst = set(R[0]); s = R[1:]
            if re.match(r'v_(add|sub|subrev|addc|subb)_co', base) or base.startswith('v_div_scale') or base.startswith('v_mad_u64'):
                self.dst |= R[1]; s = R[2:]
            for x in s: self.src |= x
            if self.perml: self.dst |= R[1]; self.src |= R[0]
            if base in ('v_fmac_f32','v_dot2c_f32_bf16','v_writelane_b32') or self.dpp: self.src |= R[0]
            if base == 'v_cndmask_b32' and len(ops) == 3: self.src |= regs('vcc')
            if base.startswith('v_cmpx'): self.dst |= regs('exec')
        elif self.ds:
            if mn.startswith('ds_read') or 'permute' in mn or 'swizzle' in mn:
                self.dst = R[0]
                for x in R[1:]: self.src |= x
            else:
                for x in R: self.src |= x
        elif self.vmem:
            load = '_load' in mn
            if mn in ('buffer_wbl2','buffer_inv'): pass
            elif self.lds_dma:
                for x in R: self.src |= x
                self.src |= regs('m0')
            elif load:
                self.dst = R[0]
                for x in R[1:]: self.src |= x
            else:
                for x in R: self.src |= x
                if 'x3' in mn or 'x4' in mn:
                    self.stdata = R[0] if mn.startswith('buffer_') else R[1]
                if 'atomic' in mn and 'sc0' in mods and mn.startswith('global_'): self.dst = R[0]
        elif self.salu:
            if mn.startswith('s_cmp') or mn.startswith('s_cbranch') or mn in ('s_waitcnt','s_barrier','s_nop','s_branch','s_endpgm','s_sleep','s_setprio') or mn.startswith('s_bitcmp'):
                for x in R: self.src |= x
            else:
                self.dst = R[0] if R else set()
                for x in R[1:]: self.src |= x
                if 'saveexec' in mn: self.dst |= regs('exec')
def need(p, c):
    n = 0
    vd = {r for r in p.dst if r[0] in 'va'}
    sd = {r for r in p.dst if r[0] == 's'}
    if p.mfma:
        big = {8: 12, 4: 8}[p.passes]; ovl = {8: 10, 4: 6}[p.passes]; war = {8: 7, 4: 3}[p.passes]
        if c.mfma:
            if vd & c.srcAB: n = max(n, big)
            if vd & c.srcC:
                if not (c.srcC == vd and c.passes == p.passes): n = max(n, ovl)
            elif vd & c.dst: n = max(n, ovl)
        elif c.valu or c.vmem or c.ds:
            if vd & (c.src | c.dst): n = max(n, big)
            if c.valu and (p.srcC & c.dst): n = max(n, war)
    if p.valu:
        if c.mfma and (vd & c.src): n = max(n, 3 if p.dot else 2)
        if c.mfma and (('s','exec') in sd): n = max(n, 4)
        if p.trans and c.valu and not c.trans and (vd & c.src): n = max(n, 1)
        if p.trans and c.valu and c.trans and (vd & c.src): n = max(n, 1)
        if c.valu and (c.dpp or c.perml) and (vd & c.src): n = max(n, 2)
        if c.valu and c.base in ('v_readfirstlane_b32','v_readlane_b32') and (vd & c.src): n = max(n, 1)
        if c.vmem and (sd & c.src): n = max(n, 5)
        if c.valu and (sd & c.src):
            n = max(n, 4 if c.base in ('v_readlane_b32','v_writelane_b32') else 2)
        if ('s','exec') in sd and c.valu and (c.dpp or c.perml or c.base.startswith('v_read')): n = max(n, 5)
        if p.dot:
            if (c.valu or c.vmem or c.ds) and (vd & (c.src | c.dst)):
                same = c.valu and c.base == p.base
                if same:
                    ab = set()
                    for o in (c.ops[1:3]): ab |= regs(o)
                    if vd & ab: n = max(n, 3)
                else: n = max(n, 3)
        if c.salu and (sd & c.src): n = max(n, 1)
    if p.salu and ('s','m0') in sd and c.lds_dma: n = max(n, 1)
    if p.vmem and p.stdata and (p.stdata & c.dst) and not c.salu: n = max(n, 2)
    return n
def fix(lines, verbose=False):
    ins = [I(l) for l in lines]
    labpos = {x.text.split(';')[0].strip()[:-1]: k for k, x in enumerate(ins) if x.label}
    region = [[] for _ in ins]
    for k, x in enumerate(ins):
        if x.mn.startswith('s_cbranch') or x.mn == 's_branch':
            t = labpos.get(x.ops[0])
            if t is not None and t > k:
                for q in range(k+1, t): region[q].append(k)
    out = []
    added = 0
    for k, c in enumerate(ins):
        if c.ws:
            dist = 0; req = 0
            rc = set(region[k])
            for (p, rp) in reversed(out):
                if dist >= 20 and True:
                    pass
                if p.ws:
                    n = need(p, c)
                    if n:
                        d = 0
                        for (q, rq) in reversed(out):
                            if q is p: break
                            if q.ws and set(rq) <= (rc | set(rp)): d += q.ws
                        req = max(req, n - d)
                    if set(rp) <= rc: dist += p.ws
                if dist >= 14: break
                if p.mn in ('s_endpgm', 's_branch') and not rp: break
            if req > 0:
                if verbose: print('hazard: +%d before %s' % (req, c.text.strip()))
                out.append((I('    s_nop %d' % (req-1)), region[k])); added += 1
        out.append((c, region[k]))
    return [x.text for x, _ in out], added
```

```python
import hazard
class Prog:
    def __init__(self):
        self.L = []
        self.tail = []
        self.vm = []
        self.bgq = []
        self.nlab = 0
        self.pending = []
    def __call__(self, s):
        for line in s.split('\n'):
            line = line.strip()
            if line:
                self.L.append(line if line.endswith(':') else '    ' + line)
                if 'lgkmcnt(0)' in line and self.pending:
                    p, self.pending = self.pending, []
                    for x in p: self.L.append('    ' + x)
    def lab(self, base):
        self.nlab += 1
        return 'L_%s_%d' % (base, self.nlab)
    def vmem(self, s, tag, maybe=False):
        self(s); self.vm.append((tag, maybe))
    def vm_n(self, tag):
        last = max(k for k, (t, m) in enumerate(self.vm) if t == tag)
        return sum(1 for (t, m) in self.vm[last+1:] if not m)
    def vm_wait(self, tag, lgkm=False):
        n = self.vm_n(tag)
        assert n <= 63, n
        self('s_waitcnt vmcnt(%d)%s' % (n, ' lgkmcnt(0)' if lgkm else ''))
    def bg(self, *items):
        for it in items:
            if isinstance(it, str) and not it.startswith('@'):
                for line in it.split('\n'):
                    if line.strip(): self.bgq.append(line.strip())
            else: self.bgq.append(it)
    def bg_emit(self, n):
        while n > 0 and self.bgq:
            it = self.bgq[0]
            if isinstance(it, str) and it.startswith('@'): return
            self.bgq.pop(0)
            if callable(it): it()
            else: self(it)
            n -= 1
    def bg_release(self, name):
        if self.bgq and self.bgq[0] == name: self.bgq.pop(0)
    def bg_flush(self, upto=None):
        while self.bgq:
            it = self.bgq[0]
            if it == upto: return
            self.bgq.pop(0)
            if isinstance(it, str) and it.startswith('@'):
                assert it == '@stage', it
                self('s_waitcnt lgkmcnt(0)')
            elif callable(it): it()
            else: self(it)
    def finish(self, verbose=False):
        lines, added = hazard.fix(self.L + self.tail, verbose)
        return '\n'.join(lines) + '\n', added

class Regs:
    def __init__(self, n, start=0):
        self.free = [True]*n
        for i in range(start): self.free[i] = False
        self.names = {}
        self.hi = start
    def alloc(self, name, n=1, align=1):
        if n > 1 and align == 1: align = 2
        for b in range(0, len(self.free)-n+1):
            if b % align == 0 and all(self.free[b:b+n]):
                for i in range(b, b+n): self.free[i] = False
                self.names[name] = (b, n); self.hi = max(self.hi, b+n)
                return b
        raise RuntimeError('out of registers for ' + name + ' ' + str(sorted(self.names.items(), key=lambda x: x[1])))
    def release(self, *names):
        for name in names:
            b, n = self.names.pop(name)
            for i in range(b, b+n): self.free[i] = True
```

```python
import sys, math, struct
from asmlib import KA, kernel_text, file_text, STAMP_OFF
from prog import Prog, Regs

KNAME = 'gated_mix__ssm_conv_s5__mixer_channel_mlp__prompt_kernel'
NKS = 150
WS_A2, WS_STATS, WS_CSP, WS_EST, WS_DONE, WS_NONCE = 0, 0xA00000, 0xA10000, 0xA40000, 0xA80000, 0xA81000
WS_SIZE = 0x10000000
SLOT = 24576
MISC = 0
SB = 16384
LDS_BYTES = 163840
NONCE_K = 0x9E3779B9
SPIN_MAX = 200000
def fbits(x): return struct.unpack('<I', struct.pack('<f', x))[0]
LOG2E = 1.4426950408889634
C0 = -2.0*LOG2E*math.sqrt(2.0/math.pi)
C1 = C0*0.044715
for n in range(192): assert (n*171) >> 11 == n//12

def tau(r):
    g, hh, q = r >> 3, (r >> 2) & 1, r & 3
    jj = 4*g + q
    return 16*hh + 8*(jj & 1) + (jj >> 1)

sW, sI, sJ, sU0, sNR, sNC = 3, 4, 5, 6, 8, 9
P = dict(x=16, lre=18, lim=20, bre=22, bim=24, cre=26, cim=28, logdt=30, dskip=32, bx=34, w1=36, b1=38, w2=40, b2=42, gw=44, out=46, dbg=48, ws=50)
rX, rB, rW1, rWS, rB1, rCre, rCim, rW2, rOut = 52, 56, 60, 64, 68, 72, 76, 80, 84
sOX, sOB, sOW, sLX, sLB, sLW, sMT = 88, 89, 90, 91, 92, 93, 94
sGC = 96
sSPIN = 98
sT0, sT1, sT2, sT3 = 10, 11, 12, 13
sST = 14

def vr(b, n=1): return 'v%d' % b if n == 1 else 'v[%d:%d]' % (b, b+n-1)
def ar(b, n=1): return 'a%d' % b if n == 1 else 'a[%d:%d]' % (b, b+n-1)
def sr(b, n=1): return 's%d' % b if n == 1 else 's[%d:%d]' % (b, b+n-1)

def build(cfg):
    a = Prog()
    V = Regs(256, 1)
    stamps = cfg.get('stamps', False)
    nst = [0]
    names = []
    def stamp(name='', real=False):
        if not stamps: return
        k = nst[0]; nst[0] += 1; names.append(name)
        if a.pending: a('s_waitcnt lgkmcnt(0)')
        if real:
            a('s_memrealtime s[14:15]\ns_waitcnt lgkmcnt(0)\nv_writelane_b32 v%d, s14, %d' % (vStamp, 62 if k < 2 else 63))
        a('s_memtime s[14:15]')
        a.pending.append('v_writelane_b32 v%d, s14, %d' % (vStamp, k))
    if stamps: vStamp = V.alloc('stamp')

    def srd(d, base, nbytes):
        a('s_mov_b32 s%d, s%d\ns_and_b32 s%d, s%d, 0xffff\ns_mov_b32 s%d, 0x%x\ns_mov_b32 s%d, 0x20000' % (d, base, d+1, base+1, d+2, nbytes, d+3))

    a('s_cmp_ge_u32 s2, 256\ns_cbranch_scc1 L_end')
    a('s_load_dwordx16 s[16:31], s[0:1], 0\ns_load_dwordx16 s[32:47], s[0:1], 64\ns_load_dwordx4 s[48:51], s[0:1], 128')
    if stamps:
        a('v_mov_b32 v%d, 0' % vStamp)
        a('s_memrealtime s[14:15]\ns_memtime s[98:99]')
    vL = V.alloc('lane'); t = V.alloc('t', 8, 2)
    a('v_lshrrev_b32 v%d, 6, v0\nv_and_b32 v%d, 63, v0\nv_readfirstlane_b32 s%d, v%d' % (t, vL, sW, t))
    if cfg.get('map', '4x8') == '4x8':
        a('s_and_b32 s10, s2, 7\ns_lshr_b32 s11, s2, 3')
        a('s_lshr_b32 s12, s10, 1\ns_lshl_b32 s12, s12, 2\ns_lshr_b32 s13, s11, 3\ns_add_u32 s%d, s12, s13' % sI)
        a('s_and_b32 s12, s10, 1\ns_lshl_b32 s12, s12, 3\ns_and_b32 s13, s11, 7\ns_add_u32 s%d, s12, s13' % sJ)
    else:
        a('s_and_b32 s10, s2, 7\ns_lshr_b32 s11, s2, 3')
        a('s_lshl_b32 s12, s10, 1\ns_lshr_b32 s13, s11, 4\ns_add_u32 s%d, s12, s13\ns_and_b32 s%d, s11, 15' % (sI, sJ))
    a('s_min_u32 s10, s%d, 6\ns_mul_i32 s11, s%d, 5\ns_add_u32 s%d, s10, s11' % (sJ, sJ, sU0))
    vRdB = V.alloc('rdB', 4); vRdX = V.alloc('rdX', 4); vTr = V.alloc('tr')
    vXs = V.alloc('xs', 4); vBs = V.alloc('bs', 2); vWs = V.alloc('wsrc', 3)
    vN = V.alloc('n'); vH = V.alloc('h'); vL16 = V.alloc('l16')
    a('v_and_b32 v%d, 31, v%d\nv_lshrrev_b32 v%d, 5, v%d\nv_lshlrev_b32 v%d, 4, v%d' % (vN, vL, vH, vL, vL16, vL))
    a('v_lshrrev_b32 v%d, 3, v%d' % (t, vL))
    a('v_and_b32 v%d, 7, v%d' % (t+1, vL))
    a('v_lshrrev_b32 v%d, 1, v%d\nv_xor_b32 v%d, v%d, v%d\nv_lshlrev_b32 v%d, 4, v%d' % (t+2, t, t+1, t+1, t+2, t+1, t+1))
    a('v_lshl_add_u32 v%d, v%d, 10, v%d' % (vBs, t, t+1))
    a('v_xor_b32 v%d, 64, v%d\nv_add_u32 v%d, 7168, v%d' % (vBs+1, vBs, vBs+1, vBs+1))
    a('v_lshrrev_b32 v%d, 2, v%d\nv_lshlrev_b32 v%d, 4, v%d' % (t+2, t, t+2, t+2))
    a('v_and_b32 v%d, 1, v%d\nv_lshl_add_u32 v%d, v%d, 3, v%d' % (t+3, t, t+2, t+3, t+2))
    a('v_bfe_u32 v%d, v%d, 1, 1\nv_add_u32 v%d, v%d, v%d' % (t+3, t, t+2, t+2, t+3))
    a('s_lshl_b32 s10, s%d, 5\nv_add_u32 v%d, s10, v%d' % (sW, t+2, t+2))
    a('v_lshl_add_u32 v%d, v%d, 10, v%d' % (vXs, t+2, t+1))
    a('v_xor_b32 v%d, 64, v%d\nv_add_u32 v%d, 1024, v%d' % (vXs+1, vXs, vXs+1, vXs+1))
    a('v_add_u32 v%d, 2048, v%d\nv_add_u32 v%d, 2048, v%d' % (vXs+2, vXs, vXs+3, vXs+1))
    a('s_lshl_b32 s%d, s%d, 17' % (sOX, sI))
    a('s_lshl_b32 s10, s%d, 5\ns_and_b32 s11, s%d, 1\ns_lshl_b32 s11, s11, 4\ns_add_u32 s10, s10, s11\ns_lshl_b32 s%d, s10, 10' % (sJ, sW, sOB))
    a('s_mul_i32 s10, s%d, %d\ns_lshl_b32 s11, s%d, 5\ns_add_u32 s%d, s10, s11' % (sW, 32*2752, sU0, sOW))
    a('s_lshl_b32 s10, s%d, 12\ns_add_u32 s%d, s10, 24576\ns_lshl_b32 s%d, s%d, 11\ns_mul_i32 s%d, s%d, 6144' % (sW, sLX, sLB, sW, sLW, sW))
    a('s_lshl_b32 s10, s%d, 2\ns_add_u32 s10, s10, s%d\ns_mul_i32 s%d, s10, %d' % (sI, sW, sMT, NKS*1024))
    vE0 = V.alloc('e0'); vE1 = V.alloc('e1'); vE2 = V.alloc('e2')
    a('v_lshrrev_b32 v%d, 2, v%d\nv_mul_u32_u24 v%d, 2752, v%d\nv_and_b32 v%d, 3, v%d\nv_lshl_add_u32 v%d, v%d, 4, v%d' % (t, vL, t, t, t+1, vL, vE0, t+1, t))
    a('v_add_u32 v%d, %d, v%d' % (vE1, 16*2752-1024, vE0))
    a('v_lshlrev_b32 v%d, 2, v%d' % (vE2, vL))
    a('s_lshl_b32 s10, s%d, 6\nv_lshl_add_u32 v%d, v%d, 1, s10' % (sJ, t+7, vN))
    a('s_waitcnt lgkmcnt(0)')
    if stamps: a('v_writelane_b32 v%d, s14, 61\nv_writelane_b32 v%d, s98, 0' % (vStamp, vStamp)); nst[0] = 1; names.append('start')
    a('s_lshl_b32 s10, s%d, 7\ns_add_u32 s10, s10, 0x%x\ns_load_dword s%d, s[50:51], s10' % (sI, WS_NONCE, sNR))
    a('s_lshl_b32 s11, s%d, 7\ns_add_u32 s11, s11, 0x%x\ns_load_dword s%d, s[50:51], s11' % (sJ, WS_NONCE+0x800, sNC))
    srd(rX, P['x'], 2048*1024)
    srd(rW1, P['w1'], 512*2752)
    srd(rB1, P['b1'], 2752)
    xs0 = V.alloc('xs0', 4, 2); xs1 = V.alloc('xs1', 4, 2); gw = V.alloc('gw', 4, 2); lp = V.alloc('lp', 3)
    a('s_lshl_b32 s10, s%d, 7\ns_lshl_b32 s11, s%d, 3\ns_add_u32 s10, s10, s11\ns_lshl_b32 s11, s%d, 1\ns_add_u32 s7, s10, s11\ns_lshl_b32 s10, s7, 10' % (sI, sJ, sW))
    a.vmem('buffer_load_dwordx4 %s, v%d, s[%d:%d], s10 offen' % (vr(xs0,4), vL16, rX, rX+3), 'early')
    a.vmem('buffer_load_dwordx4 %s, v%d, s[%d:%d], s10 offen offset:1024' % (vr(xs1,4), vL16, rX, rX+3), 'early')
    a.vmem('global_load_dwordx4 %s, v%d, s[%d:%d]' % (vr(gw,4), vL16, P['gw'], P['gw']+1), 'early')
    a('s_mul_i32 s10, s%d, %d\ns_lshl_b32 s11, s%d, 5\ns_add_u32 s10, s10, s11\ns_lshl_b32 s11, s%d, 6\ns_add_u32 s10, s10, s11' % (sI, 32*2752, sU0, sW))
    a('s_add_u32 m0, s%d, %d' % (sLB, MISC))
    a.vmem('buffer_load_dwordx4 v%d, s[%d:%d], s10 offen lds' % (vE0, rW1, rW1+3), 'early')
    a.vmem('buffer_load_dwordx4 v%d, s[%d:%d], s10 offen offset:1024 lds' % (vE1, rW1, rW1+3), 'early')
    a('s_lshl_b32 s10, s%d, 8\ns_add_u32 m0, s10, %d\ns_lshl_b32 s11, s%d, 5' % (sW, MISC+8192, sU0))
    a.vmem('buffer_load_dword v%d, s[%d:%d], s11 offen lds' % (vE2, rB1, rB1+3), 'early')
    for k, nm in enumerate(('lre', 'lim', 'logdt')):
        a.vmem('global_load_ushort v%d, v%d, s[%d:%d]' % (lp+k, t+7, P[nm], P[nm]+1), 'early')
    V.release('e0', 'e1', 'e2')
    a('s_cmp_lt_u32 s%d, 2\ns_cselect_b32 s%d, s%d, s%d\ns_cselect_b32 s10, s%d, s%d' % (sW, rB, P['bre'], P['bim'], P['bre']+1, P['bim']+1))
    a('s_and_b32 s%d, s10, 0xffff\ns_mov_b32 s%d, 0x%x\ns_mov_b32 s%d, 0x20000' % (rB+1, rB+2, 512*1024, rB+3))

    def issue_item(n):
        slot = (n % 6)*SLOT
        out = []
        if n < 8:
            out.append(('s', 's_add_u32 m0, s%d, %d' % (sLX, slot)))
            for q in range(4):
                out.append(('v', 'buffer_load_dwordx4 v%d, s[%d:%d], s%d offen offset:%d lds' % (vXs+q, rX, rX+3, sOX, 1024*q)))
            out.append(('s', 's_add_u32 m0, s%d, %d' % (sLB, SB+slot)))
            out.append(('s', 's_add_u32 s%d, s%d, 128' % (sOX, sOX)))
            for q in range(2):
                out.append(('v', 'buffer_load_dwordx4 v%d, s[%d:%d], s%d offen offset:%d lds' % (vBs+q, rB, rB+3, sOB, 1024*q)))
            out.append(('s', 's_add_u32 s%d, s%d, 128' % (sOB, sOB)))
        else:
            for blk in range(2):
                out.append(('s', 's_add_u32 m0, s%d, %d' % (sLW, SB + slot + 3072*blk)))
                for q in range(3):
                    out.append(('v', 'buffer_load_dwordx4 v%d, s[%d:%d], s%d offen offset:%d lds' % (vWs+q, rW1, rW1+3, sOW, 1024*q)))
                out.append(('s', 's_add_u32 s%d, s%d, %d' % (sOW, sOW, 16*2752 if blk == 0 else (128-16)*2752)))
        return out
    def emit_item(n):
        for k, s in issue_item(n):
            if k == 's': a(s)
            else: a.vmem(s, 'item%d' % n)
    for n in range(6): emit_item(n)
    srd(rWS, P['ws'], WS_SIZE)
    a('v_lshrrev_b32 v%d, 1, v%d\nv_and_b32 v%d, 7, v%d\nv_xor_b32 v%d, v%d, v%d\nv_lshlrev_b32 v%d, 4, v%d\nv_lshl_add_u32 v%d, v%d, 7, v%d' % (t, vN, t, t, t, t, vH, t, t, vRdB, vN, t))
    for s in range(1, 4): a('v_xor_b32 v%d, %d, v%d' % (vRdB+s, s << 5, vRdB))
    for s in range(4): a('v_add_u32 v%d, s%d, v%d' % (vRdX+s, sLX, vRdB+s))
    for s in range(4): a('v_add_u32 v%d, %d, v%d' % (vRdB+s, SB, vRdB+s))
    for q in range(3):
        a('v_add_u32 v%d, %d, v%d\nv_mul_u32_u24 v%d, 171, v%d\nv_lshrrev_b32 v%d, 11, v%d' % (t, 64*q, vL, t+1, t, t+1, t+1))
        a('v_mul_u32_u24 v%d, 12, v%d\nv_sub_u32 v%d, v%d, v%d\nv_mul_u32_u24 v%d, 2752, v%d' % (t+2, t+1, t, t, t+2, t+1, t+1))
        a('v_lshl_add_u32 v%d, v%d, 4, v%d' % (vWs+q, t, t+1))
        if q: a('v_subrev_u32 v%d, %d, v%d' % (vWs+q, 1024*q, vWs+q))
    vRp = V.alloc('rp'); vCq = V.alloc('cq')
    a('v_bfe_u32 v%d, v%d, 2, 2\nv_lshl_add_u32 v%d, v%d, 3, v%d' % (t, vL, vRp, vH, t))
    a('v_bfe_u32 v%d, v%d, 4, 1\nv_and_b32 v%d, 3, v%d\nv_lshlrev_b32 v%d, 3, v%d\nv_lshl_add_u32 v%d, v%d, 5, v%d' % (t, vL, t+1, vL, t+1, t+1, vCq, t, t+1))
    a('s_movk_i32 s10, 192\nv_mad_u32_u24 v%d, v%d, s10, v%d\nv_add_u32 v%d, %d, v%d' % (vTr, vRp, vCq, vTr, SB+2*SLOT, vTr))
    a('s_mov_b32 s%d, 0x%x\ns_mov_b32 s%d, 0x%x\ns_mov_b32 s%d, 0' % (sGC, fbits(C0), sGC+1, fbits(C1), sSPIN))

    st = V.alloc('st', 6, 2); fr = V.alloc('fr', 8, 2)
    a('v_lshl_add_u32 v%d, v%d, 6, v%d\nv_add_u32 v%d, s%d, v%d' % (t, vRp, vCq, t, sLB, t))
    for k in range(6): a('v_mov_b32 v%d, 0' % (st+k))
    a('v_mov_b32 v%d, 0x3f803f80\nv_mov_b32 v%d, 0' % (t+1, t+2))
    stamp('issued')
    a.vm_wait('early', lgkm=True)
    stamp('early')
    a('s_add_u32 s%d, s%d, 0x%x\ns_add_u32 s%d, s%d, 0x%x' % (sNR, sNR, NONCE_K, sNC, sNC, NONCE_K))
    for s in range(2):
        for hf in range(2):
            a('ds_read_b64_tr_b16 %s, v%d offset:%d' % (vr(fr+4*s+2*hf, 2), t, MISC + (16*s+4*hf)*64))
    for k in range(4):
        for tok, xr in enumerate((xs0, xs1)):
            a('v_dot2c_f32_bf16 v%d, v%d, v%d' % (st+tok, xr+k, t+1))
            a('v_dot2c_f32_bf16 v%d, v%d, v%d' % (st+2+tok, xr+k, xr+k))
            a('v_dot2c_f32_bf16 v%d, v%d, v%d' % (st+4+tok, xr+k, gw+k))
    a('s_waitcnt lgkmcnt(0)')
    for k in range(8): a('v_dot2c_f32_bf16 v%d, v%d, v%d' % (t+2, fr+k, t+1))
    for k in range(3): a('v_permlane32_swap_b32 v%d, v%d' % (st+2*k, st+2*k+1))
    a('v_mov_b32 v%d, v%d' % (t+3, t+2))
    for k in range(3): a('v_add_f32 v%d, v%d, v%d' % (st+2*k, st+2*k, st+2*k+1))
    a('v_permlane32_swap_b32 v%d, v%d' % (t+2, t+3))
    for sh in ('row_shr:1', 'row_shr:2', 'row_shr:4', 'row_shr:8'):
        for k in range(3): a('v_add_f32_dpp v%d, v%d, v%d %s row_mask:0xf bank_mask:0xf' % (st+2*k, st+2*k, st+2*k, sh))
    for k in range(3): a('v_add_f32_dpp v%d, v%d, v%d row_bcast:15 row_mask:0xa bank_mask:0xf' % (st+2*k, st+2*k, st+2*k))
    a('v_add_f32 v%d, v%d, v%d\nv_mov_b32 v%d, s%d' % (t+2, t+2, t+3, t+3, sNC))
    a('s_lshl_b32 s10, s%d, 4\ns_add_u32 s10, s10, s%d\ns_mul_i32 s10, s10, 768\ns_lshl_b32 s11, s%d, 8\ns_add_u32 s10, s10, s11\ns_add_u32 s10, s10, 0x%x' % (sJ, sI, sW, WS_CSP))
    a('v_lshlrev_b32 v%d, 3, v%d' % (t+4, vN))
    Lz = a.lab('z'); Lz2 = a.lab('z2')
    a('s_cmp_eq_u32 s%d, 3\ns_cbranch_scc1 %s' % (sW, Lz))
    a.vmem('buffer_store_dwordx2 %s, v%d, s[%d:%d], s10 offen sc1' % (vr(t+2,2), t+4, rWS, rWS+3), 'pub0')
    a('s_branch %s\n%s:' % (Lz2, Lz))
    a('v_mov_b32 v%d, 0\nv_mov_b32 v%d, 0\nv_mov_b32 v%d, s%d\nv_mov_b32 v%d, s%d' % (fr, fr+2, fr+1, sNC, fr+3, sNC))
    a('s_lshl_b32 s10, s%d, 5\ns_add_u32 s10, s10, s%d\ns_lshl_b32 s10, s10, 9\ns_add_u32 s10, s10, 0x%x\nv_lshlrev_b32 v%d, 4, v%d' % (sJ, sI, WS_EST, t+4, vN))
    a('buffer_store_dwordx4 %s, v%d, s[%d:%d], s10 offen sc1' % (vr(fr,4), t+4, rWS, rWS+3))
    a('%s:' % Lz2)
    a('v_mul_f32 v%d, 0x%x, v%d\nv_mul_f32 v%d, 0x%x, v%d' % (st, fbits(1/512), st, st+2, fbits(1/512), st+2))
    a('v_fma_f32 v%d, -v%d, v%d, v%d\nv_max_f32 v%d, 0, v%d' % (st+2, st, st, st+2, st+2, st+2))
    a('v_cvt_pk_bf16_f32 v%d, v%d, v%d' % (st+1, st+2, st+4))
    a('v_lshlrev_b32 v%d, 16, v%d\nv_and_b32 v%d, 0xffff0000, v%d' % (st+2, st+1, st+4, st+1))
    a('v_add_f32 v%d, 0x%x, v%d\nv_mul_f32 v%d, 0x%x, v%d' % (st+2, fbits(1e-5), st+2, st+4, fbits(-LOG2E), st+4))
    a('v_cvt_pk_bf16_f32 v%d, v%d, v%d\nv_exp_f32 v%d, v%d' % (st+2, st+2, st+2, st+4, st+4))
    a('v_lshlrev_b32 v%d, 16, v%d\nv_add_f32 v%d, 1.0, v%d' % (st+2, st+2, st+4, st+4))
    a('v_sqrt_f32 v%d, v%d\nv_rcp_f32 v%d, v%d' % (st+2, st+2, st+4, st+4))
    a('v_mov_b32 v%d, s%d\nv_mov_b32 v%d, s%d' % (st+1, sNR, st+3, sNR))
    a('v_cvt_pk_bf16_f32 v%d, v%d, v%d' % (st, st, st+2))
    a('v_cvt_pk_bf16_f32 v%d, v%d, v%d\nv_lshlrev_b32 v%d, 16, v%d\nv_sub_f32 v%d, 1.0, v%d' % (st+4, st+4, st+4, st+4, st+4, st+5, st+4))
    a('v_cvt_pk_bf16_f32 v%d, v%d, v%d' % (st+2, st+4, st+5))
    a('s_lshl_b32 s10, s7, 4\ns_add_u32 s10, s10, 0x%x\nv_lshlrev_b32 v%d, 4, v%d' % (WS_STATS, t+4, vH))
    a('s_mov_b32 exec_lo, 0x80000000\ns_mov_b32 exec_hi, 0x80000000')
    a.vmem('buffer_store_dwordx4 %s, v%d, s[%d:%d], s10 offen sc1' % (vr(st,4), t+4, rWS, rWS+3), 'pub0')
    a('s_mov_b64 exec, -1')
    V.release('xs0', 'xs1', 'gw', 'st', 'fr')
    stamp('T0')

    lam = V.alloc('lam', 2); l8 = V.alloc('l8', 2); l16 = V.alloc('l16c', 2); l128 = V.alloc('l128', 2); l1k = V.alloc('l1k', 2)
    c2 = V.alloc('c2', 2); pc = V.alloc('pc', 2); q0 = V.alloc('q0', 2); q1 = V.alloc('q1', 2)
    def csq(d, s):
        return 'v_mul_f32 v%d, v%d, v%d\nv_mul_f32 v%d, v%d, v%d\nv_fma_f32 v%d, v%d, v%d, -v%d\nv_add_f32 v%d, v%d, v%d' % (t, s+1, s+1, t+1, s, s+1, d, s, s, t, d+1, t+1, t+1)
    def cmul(d, x, y):
        return 'v_mul_f32 v%d, v%d, v%d\nv_mul_f32 v%d, v%d, v%d\nv_fma_f32 v%d, -v%d, v%d, v%d\nv_fma_f32 v%d, v%d, v%d, v%d' % (d, x, y, d+1, x, y+1, d, x+1, y+1, d, d+1, x+1, y, d+1)
    def cfma(d, x, y, z):
        return 'v_fma_f32 v%d, v%d, v%d, v%d\nv_fma_f32 v%d, v%d, v%d, v%d\nv_fma_f32 v%d, -v%d, v%d, v%d\nv_fma_f32 v%d, v%d, v%d, v%d' % (d[0], x, y[0], z[0], d[1], x, y[1], z[1], d[0], x+1, y[1], d[0], d[1], x+1, y[0], d[1])
    a.bg('v_lshlrev_b32 v%d, 16, v%d\nv_lshlrev_b32 v%d, 16, v%d\nv_lshlrev_b32 v%d, 16, v%d' % (lp, lp, lp+1, lp+1, lp+2, lp+2))
    a.bg('v_mul_f32 v%d, 0x%x, v%d\nv_exp_f32 v%d, v%d\nv_mul_f32 v%d, v%d, v%d' % (lp+2, fbits(LOG2E), lp+2, lp+2, lp+2, t+2, lp, lp))
    a.bg('v_cvt_pk_bf16_f32 v%d, v%d, v%d\nv_fma_f32 v%d, v%d, v%d, v%d\nv_lshlrev_b32 v%d, 16, v%d' % (lp+2, lp+2, lp+2, t+2, lp+1, lp+1, t+2, lp+2, lp+2))
    a.bg('v_rcp_f32 v%d, v%d\nv_mul_f32 v%d, v%d, v%d\nv_mul_f32 v%d, v%d, v%d' % (t+2, t+2, t, lp+2, lp, t+1, lp+2, lp+1))
    a.bg('v_mul_f32 v%d, 0x%x, v%d\nv_mul_f32 v%d, 0.15915494, v%d' % (t, fbits(LOG2E), t, t+1, t+1))
    a.bg('v_exp_f32 v%d, v%d\nv_rndne_f32 v%d, v%d\nv_sub_f32 v%d, v%d, v%d\nv_add_f32 v%d, v%d, v%d' % (t, t, t+3, t+1, t+1, t+1, t+3, t+2, t+2, t+2))
    a.bg('v_cos_f32 v%d, v%d\nv_sin_f32 v%d, v%d\nv_mul_f32 v%d, v%d, v%d\nv_mul_f32 v%d, v%d, v%d' % (lam, t+1, lam+1, t+1, lam, lam, t, lam+1, lam+1, t))
    a.bg('v_add_f32 v%d, -1.0, v%d' % (t+3, lam))
    a.bg('v_mul_f32 v%d, v%d, v%d\nv_mul_f32 v%d, v%d, v%d' % (c2, t+3, lp, c2+1, lam+1, lp))
    a.bg('v_fma_f32 v%d, v%d, v%d, v%d\nv_fma_f32 v%d, -v%d, v%d, v%d' % (c2, lam+1, lp+1, c2, c2+1, t+3, lp+1, c2+1))
    a.bg('v_mul_f32 v%d, v%d, v%d\nv_mul_f32 v%d, v%d, v%d' % (c2, c2, t+2, c2+1, c2+1, t+2))
    a.bg(csq(q0, lam), csq(q1, q0), csq(l8, q1), csq(l16, l8), csq(q0, l16), csq(q1, q0), csq(l128, q1))
    a.bg('s_mov_b32 s10, 0\ns_mov_b32 s11, -1\nv_mov_b32 v%d, 1.0\nv_mov_b32 v%d, 0' % (t+2, t+3))
    a.bg('v_cndmask_b32 v%d, v%d, v%d, s[10:11]\nv_cndmask_b32 v%d, v%d, v%d, s[10:11]' % (t+4, t+2, l16, t+5, t+3, l16+1))
    a.bg(lambda: a('s_bitcmp1_b32 s%d, 0\ns_cselect_b64 s[10:11], -1, 0' % sW), lambda: a('s_bitcmp1_b32 s%d, 1\ns_cselect_b64 s[12:13], -1, 0' % sW))
    a.bg('v_cndmask_b32 v%d, v%d, v%d, s[10:11]\nv_cndmask_b32 v%d, v%d, v%d, s[10:11]' % (q0, t+2, q0, q0+1, t+3, q0+1))
    a.bg('v_cndmask_b32 v%d, v%d, v%d, s[12:13]\nv_cndmask_b32 v%d, v%d, v%d, s[12:13]' % (q1, t+2, q1, q1+1, t+3, q1+1))
    a.bg(cmul(t+6, t+4, q0), cmul(pc, t+6, q1))
    a.bg(csq(q0, l128), csq(q1, q0), csq(l1k, q1))
    vb = V.alloc('vb', 48, 2)
    a.bg('s_lshl_b32 s10, s%d, 8\nv_lshl_add_u32 v%d, v%d, 3, s10' % (sW, t+6, vH))
    for k in range(12):
        a.bg('ds_read_b64 %s, v%d offset:%d' % (vr(vb+4*k+2, 2), t+6, MISC+8192+64*(k//4)+16*(k%4)))
    a.bg('@stage')
    for k in range(12):
        b = vb+4*k
        a.bg('v_lshlrev_b32 v%d, 16, v%d\nv_and_b32 v%d, 0xffff0000, v%d\nv_lshlrev_b32 v%d, 16, v%d\nv_and_b32 v%d, 0xffff0000, v%d' % (b, b+2, b+1, b+2, b+2, b+3, b+3, b+3))

    accR = V.alloc('accR', 16, 4); accI = V.alloc('accI', 16, 4); accF = V.alloc('accF', 48, 4)
    AX, AB = 0, 128
    EARR, CSX, CSF = MISC, MISC+4096, MISC+9216
    stages = []
    for n in range(8):
        R = []; M = []
        buf = AB + 32*(n % 2); slot = (n % 3)*SLOT
        for s in range(4):
            R.append('ds_read_b128 %s, v%d offset:%d' % (ar(AX+16*n+4*s, 4), vRdX+s, slot))
            R.append('ds_read_b128 %s, v%d offset:%d' % (ar(buf+8*s, 4), vRdB+s, slot))
            R.append('ds_read_b128 %s, v%d offset:%d' % (ar(buf+8*s+4, 4), vRdB+s, slot+4096))
            for p, acc in enumerate((accR, accI)):
                c = '0' if (n == 0 and s == 0) else vr(acc, 16)
                M.append('v_mfma_f32_32x32x16_bf16 %s, %s, %s, %s' % (vr(acc, 16), ar(AX+16*n+4*s, 4), ar(buf+8*s+4*p, 4), c))
        stages.append(dict(item=n, R=R, M=M))
    for q in range(4):
        for u in range(4):
            R = []; M = []
            k = 4*q+u; buf = AB + 32*(k % 2)
            for s2 in range(2):
                s = 2*u+s2; ks = 8*q+s
                for tt in range(3):
                    f = buf + 12*s2 + 4*tt
                    for hf in range(2):
                        R.append('ds_read_b64_tr_b16 %s, v%d offset:%d' % (ar(f+2*hf, 2), vTr, (16*s+4*hf)*192 + 64*tt))
                    c = '0' if ks == 0 else vr(accF+16*tt, 16)
                    M.append('v_mfma_f32_32x32x16_bf16 %s, %s, %s, %s' % (vr(accF+16*tt, 16), ar(f, 4), ar(AX+4*ks, 4), c))
            stages.append(dict(item=8+q if u == 0 else None, R=R, M=M))
    hooks = {}

    def h1():
        a.bg('v_mov_b32 v%d, 0\nv_mov_b32 v%d, 0\nv_lshlrev_b32 v%d, 3, v0' % (q0, q0+1, q1))
        a.bg('ds_write_b64 v%d, %s offset:%d' % (q1, vr(q0, 2), EARR))
    eA = V.alloc('eA', 2); eB = V.alloc('eB', 2); eT = V.alloc('eT', 4); e16 = V.alloc('e16', 2)
    def pass1():
        cur = [(accR, accI), (accR+1, accI+1)]
        for s in range(1, 8):
            A_ = [];
            for ch in range(2):
                fin = (eA, eB)[ch]
                d = (fin, fin+1) if (7-s) % 2 == 0 else (eT+2*ch, eT+2*ch+1)
                A_.append(cfma(d, lam, cur[ch], (accR+2*s+ch, accI+2*s+ch)).split('\n'))
                cur[ch] = d
            for x, y in zip(*A_): a.bg(x, y)
        a.bg(cfma((e16, e16+1), l8, (eA, eA+1), (eB, eB+1)))
        a.bg('s_lshl_b32 s10, s%d, 9\nv_lshl_add_u32 v%d, v%d, 8, s10\nv_lshl_add_u32 v%d, v%d, 3, v%d' % (sW, eB, vH, eB, vN, eB))
        a.bg('ds_write_b64 v%d, %s offset:%d' % (eB, vr(e16, 2), EARR+7*256))
        a.bg('@bar9')
    ex = V.alloc('ex', 16, 2); S = V.alloc('S', 2); uR = V.alloc('uR', 16, 2)
    def h9():
        for s in range(7): a.bg('ds_read_b64 %s, v%d offset:%d' % (vr(ex+2*s, 2), eB, EARR+256*s))
        a.bg('v_lshlrev_b32 v%d, 2, v%d\nv_and_b32 v%d, 16, v%d\nv_and_b32 v%d, 1, v%d\nv_lshl_add_u32 v%d, v%d, 3, v%d' % (t, vN, t, t, t+1, vN, t, t+1, t))
        a.bg('v_bfe_u32 v%d, v%d, 1, 1\nv_lshrrev_b32 v%d, 3, v%d\nv_lshl_add_u32 v%d, v%d, 1, v%d\nv_add_lshl_u32 v%d, v%d, v%d, 4' % (t+1, vN, t+2, vN, t+1, t+2, t+1, vSa, t, t+1))
        a.bg('v_min_u32 v%d, 47, v%d\nv_lshlrev_b32 v%d, 4, v%d' % (vCa, vL, vCa, vCa))
        a.bg('s_lshl_b32 s10, s%d, 2\ns_add_u32 s10, s10, s%d\ns_lshl_b32 s10, s10, 9\ns_add_u32 s99, s10, 0x%x' % (sI, sW, WS_STATS))
        a.bg('s_lshl_b32 s10, s%d, 2\ns_add_u32 s10, s10, s%d\ns_mul_i32 s10, s10, 3072\ns_add_u32 s100, s10, 0x%x' % (sJ, sW, WS_CSP))
        for s_ in gran_loads(): a.bg(lambda s_=s_: a.vmem(s_, 'gran'))
        a.bg('@stage')
        cur = (ex, ex+1)
        for s in range(1, 7):
            d = (S, S+1) if s % 2 == 0 else (eT, eT+1)
            a.bg(cfma(d, l16, cur, (ex+2*s, ex+2*s+1))); cur = d
        a.bg(cfma((ex, ex+2), l16, (S, S+1), (e16, e16+1)))
        a.bg('v_mov_b32 v%d, s%d\nv_mov_b32 v%d, s%d\nv_lshlrev_b32 v%d, 4, v%d' % (ex+1, sNC, ex+3, sNC, vEa, vN))
        a.bg('s_lshl_b32 s10, s%d, 5\ns_add_u32 s10, s10, s%d\ns_lshl_b32 s10, s10, 9\ns_add_u32 s101, s10, 0x%x\ns_add_u32 s10, s101, %d' % (sJ, sI, WS_EST, 16*512))
        def pub():
            l = a.lab('pe')
            a('s_cmp_lg_u32 s%d, 3\ns_cbranch_scc1 %s\ns_mov_b32 exec_lo, 0' % (sW, l))
            a.vmem('buffer_store_dwordx4 %s, v%d, s[%d:%d], s10 offen sc1' % (vr(ex, 4), vEa, rWS, rWS+3), 'pubE', maybe=True)
            a('s_mov_b32 exec_lo, -1\n%s:' % l)
        a.bg(pub)
        a.bg('v_lshl_add_u32 v%d, v%d, 12, v%d' % (vEa, vH, vEa))
        for k in range(16):
            a.bg('v_mul_f32 v%d, v%d, v%d\nv_fma_f32 v%d, -v%d, v%d, v%d\nv_mul_f32 v%d, -v%d, v%d\nv_fma_f32 v%d, -v%d, v%d, v%d' %
                 (uR+k, c2, accR+k, uR+k, c2+1, accI+k, uR+k, accI+k, c2, accI+k, accI+k, c2+1, accR+k, accI+k))
    vSa = V.alloc('sa'); vCa = V.alloc('ca'); vEa = V.alloc('ea')
    gS = V.alloc('gS', 4, 2); gC = V.alloc('gC', 16, 2)
    def gran_loads():
        return ['buffer_load_dwordx4 %s, v%d, s[%d:%d], s99 offen sc1' % (vr(gS, 4), vSa, rWS, rWS+3)] + \
               ['buffer_load_dwordx4 %s, v%d, s[%d:%d], s100 offen offset:%d sc1' % (vr(gC+4*k, 4), vCa, rWS, rWS+3, 768*k) for k in range(4)]
    def check(loads, tags, tmp):
        def chk():
            o = []
            o.append('v_xor_b32 v%d, s%d, v%d' % (tmp, tags[0][1], tags[0][0]))
            for (r, s_) in tags[1:]:
                o.append('v_xor_b32 v%d, s%d, v%d\nv_or_b32 v%d, v%d, v%d' % (tmp+1, s_, r, tmp, tmp, tmp+1))
            o.append('v_cmp_ne_u32 vcc, 0, v%d' % tmp)
            return '\n'.join(o)
        lr, lb = a.lab('retry'), a.lab('back')
        tailtxt = ['%s:' % lr, 's_sleep 2'] + loads + ['s_waitcnt vmcnt(0)'] + chk().split('\n') + \
                  ['s_add_u32 s%d, s%d, 1' % (sSPIN, sSPIN), 's_cmp_gt_u32 s%d, %d' % (sSPIN, SPIN_MAX), 's_cbranch_scc1 %s' % lb,
                   's_cbranch_vccnz %s' % lr, 's_branch %s' % lb]
        a.tail += [x if x.endswith(':') else '    '+x for x in tailtxt]
        return chk(), (lambda: a('s_cbranch_vccnz %s\n%s:' % (lr, lb)))
    rs = V.alloc('rs', 2); mr = V.alloc('mr')
    def h10():
        a.bg(lambda: a.vm_wait('gran'))
        c, br = check(gran_loads(), [(gS+1, sNR), (gS+3, sNR)] + [(gC+2*k+1, sNC) for k in range(8)], t)
        a.bg(c, br)
        a.bg('v_add_f32 v%d, v%d, v%d\nv_add_f32 v%d, v%d, v%d\nv_add_f32 v%d, v%d, v%d\nv_add_f32 v%d, v%d, v%d' % (gC, gC, gC+4, gC+2, gC+2, gC+6, gC+8, gC+8, gC+12, gC+10, gC+10, gC+14))
        a.bg('v_add_f32 v%d, v%d, v%d\nv_add_f32 v%d, v%d, v%d' % (gC, gC, gC+8, gC+1, gC+2, gC+10))
        a.bg('v_lshrrev_b32 v%d, 1, v%d\ns_mul_i32 s10, s%d, 384\nv_add_u32 v%d, s10, v%d' % (vCa, vCa, sW, vSa, vCa))
        a.bg('ds_write_b64 v%d, %s offset:%d' % (vSa, vr(gC, 2), CSX))
        a.bg('v_and_b32 v%d, 0xffff0000, v%d\nv_and_b32 v%d, 0xffff0000, v%d\nv_rcp_f32 v%d, v%d\nv_max_f32 v%d, 0x%x, v%d' % (rs, gS, rs+1, gS+2, rs, rs, rs+1, fbits(1e-30), rs+1))
        a.bg('v_lshlrev_b32 v%d, 16, v%d\nv_rcp_f32 v%d, v%d\nv_mul_f32 v%d, v%d, v%d' % (mr, gS, rs+1, rs+1, mr, mr, rs))
        a.bg('@bar11')
    def h11():
        for k in range(4): a.bg('ds_read_b64 %s, v%d offset:%d' % (vr(gC+2*k, 2), vCa, CSX+384*k))
        a.bg('@stage')
        a.bg('v_add_f32 v%d, v%d, v%d\nv_add_f32 v%d, v%d, v%d\nv_add_f32 v%d, v%d, v%d\nv_add_f32 v%d, v%d, v%d' % (gC, gC, gC+2, gC+1, gC+1, gC+3, gC+4, gC+4, gC+6, gC+5, gC+5, gC+7))
        a.bg('v_add_f32 v%d, v%d, v%d\nv_add_f32 v%d, v%d, v%d' % (gC, gC, gC+4, gC+1, gC+1, gC+5))
        a.bg('ds_write_b64 v%d, %s offset:%d' % (vSa, vr(gC, 2), CSF))
        a.bg('s_mul_i32 s10, s%d, 384\nv_lshl_add_u32 v%d, v%d, 4, s10' % (sW, vSa, vH))
        for tt in range(3):
            bufr = gC if tt % 2 == 0 else ex
            for g in range(4): a.bg('ds_read_b128 %s, v%d offset:%d' % (vr(bufr+4*g, 4), vSa, CSF + 128*tt + 32*g))
            if tt == 0: continue
            a.bg('@stage')
            for tq in ([0, 1] if tt == 1 else [2]):
                bq = gC if tq % 2 == 0 else ex
                for k in range(16): a.bg('v_fma_f32 v%d, -v%d, v%d, v%d' % (vb+16*tq+k, mr, bq+k, vb+16*tq+k))
    hooks = {1: h1, 9: h9, 10: h10, 11: h11}

    nbg1, nbg2 = cfg.get('nbg1', 4), cfg.get('nbg2', 3)
    prevM = []
    for k, stg in enumerate(stages + [dict(item=None, R=[], M=[])]):
        n = stg['item']
        dma = []
        if n is not None:
            if ('@bar%d' % n) in a.bgq: a.bg_flush('@bar%d' % n)
            a.vm_wait('item%d' % n, lgkm=True)
            a('s_barrier')
            a.bg_release('@bar%d' % n)
            if 1 <= n <= 6: dma = [(kk, s_, n+5) for kk, s_ in issue_item(n+5)]
            if n in (3, 6):
                d = 3*SLOT if n == 3 else -3*SLOT
                for s in range(4):
                    a(('v_add_u32 v%d, %d, v%d' if d > 0 else 'v_subrev_u32 v%d, %d, v%d') % (vRdB+s, abs(d), vRdB+s))
                    a(('v_add_u32 v%d, %d, v%d' if d > 0 else 'v_subrev_u32 v%d, %d, v%d') % (vRdX+s, abs(d), vRdX+s))
            if n > 8: a('v_add_u32 v%d, %d, v%d' % (vTr, SLOT, vTr))
            if n in hooks: hooks[n]()
            stamp('b%d' % n)
        else:
            a('s_waitcnt lgkmcnt(0)')
        a.bg_release('@stage')
        R = list(stg['R'])
        nm = max(1, len(prevM))
        per = -(-len(R)//nm); perd = -(-len(dma)//nm)
        nbg = nbg1 if k < 8 else nbg2
        for mi in range(nm):
            if prevM: a(prevM[mi])
            for _ in range(per):
                if R: a(R.pop(0))
            for _ in range(perd):
                if dma:
                    kk, s_, it = dma.pop(0)
                    if kk == 's': a(s_)
                    else: a.vmem(s_, 'item%d' % it)
            if prevM: a.bg_emit(nbg)
        prevM = stg['M']
        if k == 8: pass1()
    a.bg_flush()
    V.release('rdB', 'rdX', 'tr', 'xs', 'wsrc', 'lp', 'gS', 'sa', 'ca', 'q0', 'q1', 'accR', 'mr', 'eB', 'e16', 'ex', 'gC', 'eT')
    a('s_waitcnt lgkmcnt(0)\ns_barrier')
    stamp('b12')
    gE0 = V.alloc('gE0', 16, 2); gE1 = V.alloc('gE1', 16, 2)
    gE = lambda k: gE0+k if k < 16 else gE1+k-16
    Eloads = ['buffer_load_dwordx4 %s, v%d, s[%d:%d], s101 offen offset:%d sc1' % (vr(gE(4*s), 4), vEa, rWS, rWS+3, 512*s) for s in range(8)]
    for s_ in Eloads: a.vmem(s_, 'E')
    doB = cfg.get('phaseB', True)
    r1 = []
    if doB:
        import genb
        B = genb.setupB(a, V, cfg, locals())
        r1 = B['c_dma']() + B['w_dma'](0, 32768)
    def r1_emit(n):
        while n > 0 and r1:
            k_, s_ = r1.pop(0)
            if k_ == 's': a(s_)
            else: a.vmem(s_, 'r1'); n -= 1
    T = V.alloc('T', 8, 2); Dd = V.alloc('D', 8, 4)
    a('s_add_u32 s10, s%d, 64\ns_lshl_b32 s10, s10, 10\ns_add_u32 s99, s10, s%d' % (sU0, sMT))
    a('s_lshl_b32 s10, s%d, 12\ns_add_u32 s100, s10, s%d' % (sJ, sMT))
    Lskip = a.lab('skip5')
    for b in range(6):
        if b == 5: a('s_cmp_ge_u32 s%d, 6\ns_cbranch_scc1 %s' % (sJ, Lskip))
        if b == 4: a('s_add_u32 s99, s99, 4096')
        A0 = accF+8*b; V0 = vb+8*b; Db = Dd + 4*(b % 2)
        pr = lambda x, q: vr(x+2*q, 2)
        for q in range(4): a('v_pk_fma_f32 %s, %s, %s, %s op_sel_hi:[1,0,1]' % (pr(A0,q), pr(A0,q), vr(rs,2), pr(V0,q)))
        for q in range(4): a('v_pk_mul_f32 %s, %s, %s' % (pr(T,q), pr(A0,q), pr(A0,q)))
        for q in range(4): a('v_pk_fma_f32 %s, %s, s[%d:%d], s[%d:%d] op_sel:[0,1,0] op_sel_hi:[1,1,0]' % (pr(T,q), pr(T,q), sGC, sGC+1, sGC, sGC+1))
        for q in range(4): a('v_pk_mul_f32 %s, %s, %s' % (pr(T,q), pr(T,q), pr(A0,q)))
        for q in range(8):
            a('v_exp_f32 v%d, v%d' % (T+q, T+q))
            if b < 5 and q % 2 == 0: r1_emit(1)
        for q in range(4): a('v_pk_fma_f32 %s, %s, %s, %s op_sel:[0,1,1] op_sel_hi:[1,1,1]' % (pr(T,q), pr(T,q), vr(rs,2), vr(rs,2)))
        for q in range(8):
            a('v_rcp_f32 v%d, v%d' % (T+q, T+q))
            if b < 5 and q % 2 == 0: r1_emit(1)
        for q in range(4): a('v_pk_mul_f32 %s, %s, %s' % (pr(T,q), pr(T,q), pr(A0,q)))
        for q in range(4): a('v_cvt_pk_bf16_f32 v%d, v%d, v%d' % (Db+q, T+2*q, T+2*q+1))
        a.vmem('buffer_store_dwordx4 %s, v%d, s[%d:%d], s99 offen offset:%d sc1' % (vr(Db,4), vL16, rWS, rWS+3, 1024*(b % 4)), 'st', maybe=(b == 5))
    a('%s:' % Lskip)
    stamp('gelu')
    a.vm_wait('E')
    c, br = check(Eloads, [(gE(2*k+1), sNC) for k in range(16)], t)
    a(c); br()
    stamp('Eok')
    cur = (gE0, gE0+2)
    for s in range(1, 8):
        d = (T, T+1) if s % 2 else (T+2, T+3)
        a(cfma(d, l128, cur, (gE(4*s), gE(4*s+2)))); cur = d
    a('v_mov_b32 v%d, v%d\nv_mov_b32 v%d, v%d' % (T+2, T, T+3, T+1))
    a('v_permlane32_swap_b32 v%d, v%d\nv_permlane32_swap_b32 v%d, v%d' % (T, T+2, T+1, T+3))
    a(cfma((T+4, T+5), l1k, (T, T+1), (T+2, T+3)))
    a(cfma((T, T+1), pc, (T+4, T+5), (S, S+1)))
    a(cfma((T+2, T+3), l8, (T, T+1), (eA, eA+1)))
    for ch in range(2):
        x = T+2*ch
        a('v_mul_f32 v%d, v%d, v%d\nv_mul_f32 v%d, -v%d, v%d\nv_fma_f32 v%d, -v%d, v%d, v%d\nv_fma_f32 v%d, -v%d, v%d, v%d' %
          (T+4+ch, c2, x, T+6+ch, c2, x+1, T+4+ch, c2+1, x+1, T+4+ch, T+6+ch, c2+1, x, T+6+ch))
    pR, pI = T+4, T+6
    lm = vr(lam, 2)
    for s in range(8):
        r_, i_ = vr(uR+2*s, 2), vr(accI+2*s, 2)
        a('v_pk_fma_f32 %s, %s, %s, %s op_sel_hi:[0,1,1]' % (r_, lm, vr(pR,2), r_))
        a('v_pk_fma_f32 %s, %s, %s, %s op_sel_hi:[0,1,1]' % (i_, lm, vr(pI,2), i_))
        a('v_pk_fma_f32 %s, %s, %s, %s op_sel:[1,0,0] op_sel_hi:[1,1,1]' % (r_, lm, vr(pI,2), r_))
        a('v_pk_fma_f32 %s, %s, %s, %s op_sel:[1,0,0] op_sel_hi:[1,1,1] neg_lo:[1,0,0] neg_hi:[1,0,0]' % (i_, lm, vr(pR,2), i_))
        pR, pI = uR+2*s, accI+2*s
    for k in range(8): a('v_cvt_pk_bf16_f32 v%d, v%d, v%d' % (gE0+k, uR+2*k, uR+2*k+1))
    for k in range(8): a('v_cvt_pk_bf16_f32 v%d, v%d, v%d' % (gE0+8+k, accI+2*k, accI+2*k+1))
    a('s_lshl_b32 s10, s%d, 12\ns_add_u32 s10, s10, %d' % (sW, MISC))
    a('v_bfe_u32 v%d, v%d, 1, 2\nv_lshlrev_b32 v%d, 1, v%d\nv_xor_b32 v%d, v%d, v%d\nv_lshlrev_b32 v%d, 4, v%d' % (t, vN, t+1, vH, t, t, t+1, t, t))
    a('v_lshl_add_u32 v%d, v%d, 6, v%d\nv_add_u32 v%d, s10, v%d\nv_xor_b32 v%d, 16, v%d' % (t, vN, t, t, t, t+1, t))
    for part in range(2):
        a('ds_write_b128 v%d, %s offset:%d' % (t, vr(gE0+8*part, 4), 2048*part))
        a('ds_write_b128 v%d, %s offset:%d' % (t+1, vr(gE0+8*part+4, 4), 2048*part))
    a('v_and_b32 v%d, 1, v%d\nv_bfe_u32 v%d, v%d, 4, 1\nv_lshl_add_u32 v%d, v%d, 1, v%d' % (t+2, vL, t+3, vL, t+2, t+2, t+3))
    a('v_bfe_u32 v%d, v%d, 3, 1\nv_xor_b32 v%d, v%d, v%d\nv_lshlrev_b32 v%d, 4, v%d' % (t+3, vL, t+2, t+2, t+3, t+2, t+2))
    a('v_bfe_u32 v%d, v%d, 1, 1\nv_lshl_add_u32 v%d, v%d, 3, v%d\nv_lshl_add_u32 v%d, v%d, 6, v%d' % (t+3, vL, t+2, t+3, t+2, t+2, vRp, t+2))
    a('v_add_u32 v%d, s10, v%d\nv_xor_b32 v%d, 32, v%d' % (t+2, t+2, t+3, t+2))
    a('s_waitcnt lgkmcnt(0)')
    for q4 in range(4):
        for hf in range(2):
            a('ds_read_b64_tr_b16 %s, v%d offset:%d' % (vr(gE1+4*q4+2*hf, 2), t+2+hf, (16*q4+4*hf)*64))
    for q4 in range(4):
        a('s_waitcnt lgkmcnt(%d)' % (6-2*q4))
        a.vmem('buffer_store_dwordx4 %s, v%d, s[%d:%d], s100 offen offset:%d sc1' % (vr(gE1+4*q4,4), vL16, rWS, rWS+3, 1024*q4), 'st')
    stamp('hst')
    if doB:
        assert not r1
        a.vm_wait('r1')
        genb.round1_reads(a, B)
        r2 = []
        for pq in range(1, 10): r2 += B['w_dma'](pq, 4096*(pq-1))
        a('s_lshl_b32 s%d, s%d, 12' % (sLB, sW))
        r2 += B['w_dma'](10, MISC, sLB)
        na = cfg.get('r2a', 10)
        a('s_waitcnt lgkmcnt(0)')
        genb.emit(a, r2[:na], 'r2'); B['rest'] = r2[na:]
    a.vm_wait('st')
    a('s_barrier')
    stamp('acked')
    Ld = a.lab('done')
    a('s_cmp_lg_u32 s%d, 0\ns_cbranch_scc1 %s\ns_mov_b64 exec, 1' % (sW, Ld))
    a('s_lshl_b32 s10, s%d, 5\ns_add_u32 s10, s10, s%d\ns_lshl_b32 s10, s10, 2\ns_add_u32 s10, s10, 0x%x\nv_mov_b32 v%d, s%d\nv_mov_b32 v%d, 0' % (sI, sJ, WS_DONE, t, sNR, t+1))
    a.vmem('buffer_store_dword v%d, v%d, s[%d:%d], s10 offen sc1' % (t, t+1, rWS, rWS+3), 'flag', maybe=True)
    l1, l2 = a.lab('n1'), a.lab('n2')
    a('s_cmp_lg_u32 s%d, 0\ns_cbranch_scc1 %s\ns_lshl_b32 s10, s%d, 7\ns_add_u32 s10, s10, 0x%x' % (sJ, l1, sI, WS_NONCE))
    a.vmem('buffer_store_dword v%d, v%d, s[%d:%d], s10 offen' % (t, t+1, rWS, rWS+3), 'flag', maybe=True)
    a('%s:\ns_cmp_lg_u32 s%d, 15\ns_cbranch_scc1 %s\ns_lshl_b32 s10, s%d, 7\ns_add_u32 s10, s10, 0x%x\nv_mov_b32 v%d, s%d' % (l1, sI, l2, sJ, WS_NONCE+0x800, t+2, sNC))
    a.vmem('buffer_store_dword v%d, v%d, s[%d:%d], s10 offen' % (t+2, t+1, rWS, rWS+3), 'flag', maybe=True)
    a('%s:\ns_mov_b64 exec, -1\n%s:' % (l2, Ld))

    if doB:
        V.release('gE0', 'gE1', 'T', 'D', 'accI', 'accF', 'vb', 'uR', 'eA', 'S', 'ea', 'rs', 'lam', 'l8', 'l16c', 'l128', 'l1k', 'c2', 'pc', 'rdC', 'c4', 'bs')
        genb.phaseB(a, V, cfg, locals(), B)
    if stamps:
        stamp('end', real=True)
        a('s_waitcnt lgkmcnt(0)')
        open(cfg['out'].replace('.s', '.names'), 'w').write(' '.join(names))
        le = a.lab('st')
        a('s_cmp_lg_u32 s%d, 0\ns_cbranch_scc1 %s' % (sW, le))
        a('s_lshl_b32 s10, s2, 8\ns_add_u32 s10, s10, 0x%x\nv_lshlrev_b32 v%d, 2, v%d' % (STAMP_OFF, t, vL))
        a('buffer_store_dword v%d, v%d, s[%d:%d], s10 offen\n%s:' % (vStamp, t, rWS, rWS+3, le))
    a('L_end:\ns_endpgm')
    body, added = a.finish(cfg.get('verbose', False))
    print('vgpr hi', V.hi, 'nops added', added, 'lines', body.count('\n'), file=sys.stderr)
    k = kernel_text(KNAME, body, 512, accum=256)
    return file_text([(KNAME, 256, 256, LDS_BYTES)], [k])

if __name__ == '__main__':
    import json
    cfg = json.loads(sys.argv[2]) if len(sys.argv) > 2 else {}
    cfg['out'] = sys.argv[1]
    open(sys.argv[1], 'w').write(build(cfg))
```

```python
import sys, math, struct
from asmlib import KA, kernel_text, file_text, STAMP_OFF
from prog import Prog, Regs

KNAME = 'gated_mix__ssm_conv_s5__mixer_channel_mlp__prompt_kernel'
NKS = 150
WS_A2, WS_STATS, WS_CSP, WS_EST, WS_DONE, WS_NONCE = 0, 0xA00000, 0xA10000, 0xA40000, 0xA80000, 0xA81000
WS_SIZE = 0x10000000
SLOT = 24576
MISC = 0
SB = 16384
LDS_BYTES = 163840
NONCE_K = 0x9E3779B9
SPIN_MAX = 200000
def fbits(x): return struct.unpack('<I', struct.pack('<f', x))[0]
LOG2E = 1.4426950408889634
C0 = -2.0*LOG2E*math.sqrt(2.0/math.pi)
C1 = C0*0.044715
for n in range(192): assert (n*171) >> 11 == n//12

def tau(r):
    g, hh, q = r >> 3, (r >> 2) & 1, r & 3
    jj = 4*g + q
    return 16*hh + 8*(jj & 1) + (jj >> 1)

sW, sI, sJ, sU0, sNR, sNC = 3, 4, 5, 6, 8, 9
P = dict(x=16, lre=18, lim=20, bre=22, bim=24, cre=26, cim=28, logdt=30, dskip=32, bx=34, w1=36, b1=38, w2=40, b2=42, gw=44, out=46, dbg=48, ws=50)
rX, rB, rW1, rWS, rB1, rCre, rCim, rW2, rOut = 52, 56, 60, 64, 68, 72, 76, 80, 84
sOX, sOB, sOW, sLX, sLB, sLW, sMT = 88, 89, 90, 91, 92, 93, 94
sGC = 96
sSPIN = 98
sT0, sT1, sT2, sT3 = 10, 11, 12, 13
sST = 14

def vr(b, n=1): return 'v%d' % b if n == 1 else 'v[%d:%d]' % (b, b+n-1)
def ar(b, n=1): return 'a%d' % b if n == 1 else 'a[%d:%d]' % (b, b+n-1)
def sr(b, n=1): return 's%d' % b if n == 1 else 's[%d:%d]' % (b, b+n-1)

def build(cfg):
    a = Prog()
    V = Regs(256, 1)
    stamps = cfg.get('stamps', False)
    nst = [0]
    names = []
    def stamp(name='', real=False):
        if not stamps: return
        k = nst[0]; nst[0] += 1; names.append(name)
        if a.pending: a('s_waitcnt lgkmcnt(0)')
        if real:
            a('s_memrealtime s[14:15]\ns_waitcnt lgkmcnt(0)\nv_writelane_b32 v%d, s14, %d' % (vStamp, 62 if k < 2 else 63))
        a('s_memtime s[14:15]')
        a.pending.append('v_writelane_b32 v%d, s14, %d' % (vStamp, k))
    if stamps: vStamp = V.alloc('stamp')

    def srd(d, base, nbytes):
        a('s_mov_b32 s%d, s%d\ns_and_b32 s%d, s%d, 0xffff\ns_mov_b32 s%d, 0x%x\ns_mov_b32 s%d, 0x20000' % (d, base, d+1, base+1, d+2, nbytes, d+3))

    a('s_cmp_ge_u32 s2, 256\ns_cbranch_scc1 L_end')
    a('s_load_dwordx16 s[16:31], s[0:1], 0\ns_load_dwordx16 s[32:47], s[0:1], 64\ns_load_dwordx4 s[48:51], s[0:1], 128')
    if stamps:
        a('v_mov_b32 v%d, 0' % vStamp)
        a('s_memrealtime s[14:15]\ns_memtime s[98:99]')
    vL = V.alloc('lane'); t = V.alloc('t', 8, 2)
    a('v_lshrrev_b32 v%d, 6, v0\nv_and_b32 v%d, 63, v0\nv_readfirstlane_b32 s%d, v%d' % (t, vL, sW, t))
    if cfg.get('map', '4x8') == '4x8':
        a('s_and_b32 s10, s2, 7\ns_lshr_b32 s11, s2, 3')
        a('s_lshr_b32 s12, s10, 1\ns_lshl_b32 s12, s12, 2\ns_lshr_b32 s13, s11, 3\ns_add_u32 s%d, s12, s13' % sI)
        a('s_and_b32 s12, s10, 1\ns_lshl_b32 s12, s12, 3\ns_and_b32 s13, s11, 7\ns_add_u32 s%d, s12, s13' % sJ)
    else:
        a('s_and_b32 s10, s2, 7\ns_lshr_b32 s11, s2, 3')
        a('s_lshl_b32 s12, s10, 1\ns_lshr_b32 s13, s11, 4\ns_add_u32 s%d, s12, s13\ns_and_b32 s%d, s11, 15' % (sI, sJ))
    a('s_min_u32 s10, s%d, 6\ns_mul_i32 s11, s%d, 5\ns_add_u32 s%d, s10, s11' % (sJ, sJ, sU0))
    vRdB = V.alloc('rdB', 4); vRdX = V.alloc('rdX', 4); vTr = V.alloc('tr')
    vXs = V.alloc('xs', 4); vBs = V.alloc('bs', 2); vWs = V.alloc('wsrc', 3)
    vN = V.alloc('n'); vH = V.alloc('h'); vL16 = V.alloc('l16')
    a('v_and_b32 v%d, 31, v%d\nv_lshrrev_b32 v%d, 5, v%d\nv_lshlrev_b32 v%d, 4, v%d' % (vN, vL, vH, vL, vL16, vL))
    a('v_lshrrev_b32 v%d, 3, v%d' % (t, vL))
    a('v_and_b32 v%d, 7, v%d' % (t+1, vL))
    a('v_lshrrev_b32 v%d, 1, v%d\nv_xor_b32 v%d, v%d, v%d\nv_lshlrev_b32 v%d, 4, v%d' % (t+2, t, t+1, t+1, t+2, t+1, t+1))
    a('v_lshl_add_u32 v%d, v%d, 10, v%d' % (vBs, t, t+1))
    a('v_xor_b32 v%d, 64, v%d\nv_add_u32 v%d, 7168, v%d' % (vBs+1, vBs, vBs+1, vBs+1))
    a('v_lshrrev_b32 v%d, 2, v%d\nv_lshlrev_b32 v%d, 4, v%d' % (t+2, t, t+2, t+2))
    a('v_and_b32 v%d, 1, v%d\nv_lshl_add_u32 v%d, v%d, 3, v%d' % (t+3, t, t+2, t+3, t+2))
    a('v_bfe_u32 v%d, v%d, 1, 1\nv_add_u32 v%d, v%d, v%d' % (t+3, t, t+2, t+2, t+3))
    a('s_lshl_b32 s10, s%d, 5\nv_add_u32 v%d, s10, v%d' % (sW, t+2, t+2))
    a('v_lshl_add_u32 v%d, v%d, 10, v%d' % (vXs, t+2, t+1))
    a('v_xor_b32 v%d, 64, v%d\nv_add_u32 v%d, 1024, v%d' % (vXs+1, vXs, vXs+1, vXs+1))
    a('v_add_u32 v%d, 2048, v%d\nv_add_u32 v%d, 2048, v%d' % (vXs+2, vXs, vXs+3, vXs+1))
    a('s_lshl_b32 s%d, s%d, 17' % (sOX, sI))
    a('s_lshl_b32 s10, s%d, 5\ns_and_b32 s11, s%d, 1\ns_lshl_b32 s11, s11, 4\ns_add_u32 s10, s10, s11\ns_lshl_b32 s%d, s10, 10' % (sJ, sW, sOB))
    a('s_mul_i32 s10, s%d, %d\ns_lshl_b32 s11, s%d, 5\ns_add_u32 s%d, s10, s11' % (sW, 32*2752, sU0, sOW))
    a('s_lshl_b32 s10, s%d, 12\ns_add_u32 s%d, s10, 24576\ns_lshl_b32 s%d, s%d, 11\ns_mul_i32 s%d, s%d, 6144' % (sW, sLX, sLB, sW, sLW, sW))
    a('s_lshl_b32 s10, s%d, 2\ns_add_u32 s10, s10, s%d\ns_mul_i32 s%d, s10, %d' % (sI, sW, sMT, NKS*1024))
    vE0 = V.alloc('e0'); vE1 = V.alloc('e1'); vE2 = V.alloc('e2')
    a('v_lshrrev_b32 v%d, 2, v%d\nv_mul_u32_u24 v%d, 2752, v%d\nv_and_b32 v%d, 3, v%d\nv_lshl_add_u32 v%d, v%d, 4, v%d' % (t, vL, t, t, t+1, vL, vE0, t+1, t))
    a('v_add_u32 v%d, %d, v%d' % (vE1, 16*2752-1024, vE0))
    a('v_lshlrev_b32 v%d, 2, v%d' % (vE2, vL))
    a('s_lshl_b32 s10, s%d, 6\nv_lshl_add_u32 v%d, v%d, 1, s10' % (sJ, t+7, vN))
    a('s_waitcnt lgkmcnt(0)')
    if stamps: a('v_writelane_b32 v%d, s14, 61\nv_writelane_b32 v%d, s98, 0' % (vStamp, vStamp)); nst[0] = 1; names.append('start')
    a('s_lshl_b32 s10, s%d, 7\ns_add_u32 s10, s10, 0x%x\ns_load_dword s%d, s[50:51], s10' % (sI, WS_NONCE, sNR))
    a('s_lshl_b32 s11, s%d, 7\ns_add_u32 s11, s11, 0x%x\ns_load_dword s%d, s[50:51], s11' % (sJ, WS_NONCE+0x800, sNC))
    srd(rX, P['x'], 2048*1024)
    srd(rW1, P['w1'], 512*2752)
    srd(rB1, P['b1'], 2752)
    xs0 = V.alloc('xs0', 4, 2); xs1 = V.alloc('xs1', 4, 2); gw = V.alloc('gw', 4, 2); lp = V.alloc('lp', 3)
    a('s_lshl_b32 s10, s%d, 7\ns_lshl_b32 s11, s%d, 3\ns_add_u32 s10, s10, s11\ns_lshl_b32 s11, s%d, 1\ns_add_u32 s7, s10, s11\ns_lshl_b32 s10, s7, 10' % (sI, sJ, sW))
    a.vmem('buffer_load_dwordx4 %s, v%d, s[%d:%d], s10 offen' % (vr(xs0,4), vL16, rX, rX+3), 'early')
    a.vmem('buffer_load_dwordx4 %s, v%d, s[%d:%d], s10 offen offset:1024' % (vr(xs1,4), vL16, rX, rX+3), 'early')
    a.vmem('global_load_dwordx4 %s, v%d, s[%d:%d]' % (vr(gw,4), vL16, P['gw'], P['gw']+1), 'early')
    a('s_mul_i32 s10, s%d, %d\ns_lshl_b32 s11, s%d, 5\ns_add_u32 s10, s10, s11\ns_lshl_b32 s11, s%d, 6\ns_add_u32 s10, s10, s11' % (sI, 32*2752, sU0, sW))
    a('s_add_u32 m0, s%d, %d' % (sLB, MISC))
    a.vmem('buffer_load_dwordx4 v%d, s[%d:%d], s10 offen lds' % (vE0, rW1, rW1+3), 'early')
    a.vmem('buffer_load_dwordx4 v%d, s[%d:%d], s10 offen offset:1024 lds' % (vE1, rW1, rW1+3), 'early')
    a('s_lshl_b32 s10, s%d, 8\ns_add_u32 m0, s10, %d\ns_lshl_b32 s11, s%d, 5' % (sW, MISC+8192, sU0))
    a.vmem('buffer_load_dword v%d, s[%d:%d], s11 offen lds' % (vE2, rB1, rB1+3), 'early')
    for k, nm in enumerate(('lre', 'lim', 'logdt')):
        a.vmem('global_load_ushort v%d, v%d, s[%d:%d]' % (lp+k, t+7, P[nm], P[nm]+1), 'early')
    V.release('e0', 'e1', 'e2')
    a('s_cmp_lt_u32 s%d, 2\ns_cselect_b32 s%d, s%d, s%d\ns_cselect_b32 s10, s%d, s%d' % (sW, rB, P['bre'], P['bim'], P['bre']+1, P['bim']+1))
    a('s_and_b32 s%d, s10, 0xffff\ns_mov_b32 s%d, 0x%x\ns_mov_b32 s%d, 0x20000' % (rB+1, rB+2, 512*1024, rB+3))

    def issue_item(n):
        slot = (n % 6)*SLOT
        out = []
        if n < 8:
            out.append(('s', 's_add_u32 m0, s%d, %d' % (sLX, slot)))
            for q in range(4):
                out.append(('v', 'buffer_load_dwordx4 v%d, s[%d:%d], s%d offen offset:%d lds' % (vXs+q, rX, rX+3, sOX, 1024*q)))
            out.append(('s', 's_add_u32 m0, s%d, %d' % (sLB, SB+slot)))
            out.append(('s', 's_add_u32 s%d, s%d, 128' % (sOX, sOX)))
            for q in range(2):
                out.append(('v', 'buffer_load_dwordx4 v%d, s[%d:%d], s%d offen offset:%d lds' % (vBs+q, rB, rB+3, sOB, 1024*q)))
            out.append(('s', 's_add_u32 s%d, s%d, 128' % (sOB, sOB)))
        else:
            for blk in range(2):
                out.append(('s', 's_add_u32 m0, s%d, %d' % (sLW, SB + slot + 3072*blk)))
                for q in range(3):
                    out.append(('v', 'buffer_load_dwordx4 v%d, s[%d:%d], s%d offen offset:%d lds' % (vWs+q, rW1, rW1+3, sOW, 1024*q)))
                out.append(('s', 's_add_u32 s%d, s%d, %d' % (sOW, sOW, 16*2752 if blk == 0 else (128-16)*2752)))
        return out
    def emit_item(n):
        for k, s in issue_item(n):
            if k == 's': a(s)
            else: a.vmem(s, 'item%d' % n)
    for n in range(6): emit_item(n)
    srd(rWS, P['ws'], WS_SIZE)
    a('v_lshrrev_b32 v%d, 1, v%d\nv_and_b32 v%d, 7, v%d\nv_xor_b32 v%d, v%d, v%d\nv_lshlrev_b32 v%d, 4, v%d\nv_lshl_add_u32 v%d, v%d, 7, v%d' % (t, vN, t, t, t, t, vH, t, t, vRdB, vN, t))
    for s in range(1, 4): a('v_xor_b32 v%d, %d, v%d' % (vRdB+s, s << 5, vRdB))
    for s in range(4): a('v_add_u32 v%d, s%d, v%d' % (vRdX+s, sLX, vRdB+s))
    for s in range(4): a('v_add_u32 v%d, %d, v%d' % (vRdB+s, SB, vRdB+s))
    for q in range(3):
        a('v_add_u32 v%d, %d, v%d\nv_mul_u32_u24 v%d, 171, v%d\nv_lshrrev_b32 v%d, 11, v%d' % (t, 64*q, vL, t+1, t, t+1, t+1))
        a('v_mul_u32_u24 v%d, 12, v%d\nv_sub_u32 v%d, v%d, v%d\nv_mul_u32_u24 v%d, 2752, v%d' % (t+2, t+1, t, t, t+2, t+1, t+1))
        a('v_lshl_add_u32 v%d, v%d, 4, v%d' % (vWs+q, t, t+1))
        if q: a('v_subrev_u32 v%d, %d, v%d' % (vWs+q, 1024*q, vWs+q))
    vRp = V.alloc('rp'); vCq = V.alloc('cq')
    a('v_bfe_u32 v%d, v%d, 2, 2\nv_lshl_add_u32 v%d, v%d, 3, v%d' % (t, vL, vRp, vH, t))
    a('v_bfe_u32 v%d, v%d, 4, 1\nv_and_b32 v%d, 3, v%d\nv_lshlrev_b32 v%d, 3, v%d\nv_lshl_add_u32 v%d, v%d, 5, v%d' % (t, vL, t+1, vL, t+1, t+1, vCq, t, t+1))
    a('s_movk_i32 s10, 192\nv_mad_u32_u24 v%d, v%d, s10, v%d\nv_add_u32 v%d, %d, v%d' % (vTr, vRp, vCq, vTr, SB+2*SLOT, vTr))
    a('s_mov_b32 s%d, 0x%x\ns_mov_b32 s%d, 0x%x\ns_mov_b32 s%d, 0' % (sGC, fbits(C0), sGC+1, fbits(C1), sSPIN))

    st = V.alloc('st', 6, 2); fr = V.alloc('fr', 8, 2)
    a('v_lshl_add_u32 v%d, v%d, 6, v%d\nv_add_u32 v%d, s%d, v%d' % (t, vRp, vCq, t, sLB, t))
    for k in range(6): a('v_mov_b32 v%d, 0' % (st+k))
    a('v_mov_b32 v%d, 0x3f803f80\nv_mov_b32 v%d, 0' % (t+1, t+2))
    stamp('issued')
    a.vm_wait('early', lgkm=True)
    stamp('early')
    a('s_add_u32 s%d, s%d, 0x%x\ns_add_u32 s%d, s%d, 0x%x' % (sNR, sNR, NONCE_K, sNC, sNC, NONCE_K))
    for s in range(2):
        for hf in range(2):
            a('ds_read_b64_tr_b16 %s, v%d offset:%d' % (vr(fr+4*s+2*hf, 2), t, MISC + (16*s+4*hf)*64))
    for k in range(4):
        for tok, xr in enumerate((xs0, xs1)):
            a('v_dot2c_f32_bf16 v%d, v%d, v%d' % (st+tok, xr+k, t+1))
            a('v_dot2c_f32_bf16 v%d, v%d, v%d' % (st+2+tok, xr+k, xr+k))
            a('v_dot2c_f32_bf16 v%d, v%d, v%d' % (st+4+tok, xr+k, gw+k))
    a('s_waitcnt lgkmcnt(0)')
    for k in range(8): a('v_dot2c_f32_bf16 v%d, v%d, v%d' % (t+2, fr+k, t+1))
    for k in range(3): a('v_permlane32_swap_b32 v%d, v%d' % (st+2*k, st+2*k+1))
    a('v_mov_b32 v%d, v%d' % (t+3, t+2))
    for k in range(3): a('v_add_f32 v%d, v%d, v%d' % (st+2*k, st+2*k, st+2*k+1))
    a('v_permlane32_swap_b32 v%d, v%d' % (t+2, t+3))
    for sh in ('row_shr:1', 'row_shr:2', 'row_shr:4', 'row_shr:8'):
        for k in range(3): a('v_add_f32_dpp v%d, v%d, v%d %s row_mask:0xf bank_mask:0xf' % (st+2*k, st+2*k, st+2*k, sh))
    for k in range(3): a('v_add_f32_dpp v%d, v%d, v%d row_bcast:15 row_mask:0xa bank_mask:0xf' % (st+2*k, st+2*k, st+2*k))
    a('v_add_f32 v%d, v%d, v%d\nv_mov_b32 v%d, s%d' % (t+2, t+2, t+3, t+3, sNC))
    a('s_lshl_b32 s10, s%d, 4\ns_add_u32 s10, s10, s%d\ns_mul_i32 s10, s10, 768\ns_lshl_b32 s11, s%d, 8\ns_add_u32 s10, s10, s11\ns_add_u32 s10, s10, 0x%x' % (sJ, sI, sW, WS_CSP))
    a('v_lshlrev_b32 v%d, 3, v%d' % (t+4, vN))
    Lz = a.lab('z'); Lz2 = a.lab('z2')
    a('s_cmp_eq_u32 s%d, 3\ns_cbranch_scc1 %s' % (sW, Lz))
    a.vmem('buffer_store_dwordx2 %s, v%d, s[%d:%d], s10 offen sc1' % (vr(t+2,2), t+4, rWS, rWS+3), 'pub0')
    a('s_branch %s\n%s:' % (Lz2, Lz))
    a('v_mov_b32 v%d, 0\nv_mov_b32 v%d, 0\nv_mov_b32 v%d, s%d\nv_mov_b32 v%d, s%d' % (fr, fr+2, fr+1, sNC, fr+3, sNC))
    a('s_lshl_b32 s10, s%d, 5\ns_add_u32 s10, s10, s%d\ns_lshl_b32 s10, s10, 9\ns_add_u32 s10, s10, 0x%x\nv_lshlrev_b32 v%d, 4, v%d' % (sJ, sI, WS_EST, t+4, vN))
    a('buffer_store_dwordx4 %s, v%d, s[%d:%d], s10 offen sc1' % (vr(fr,4), t+4, rWS, rWS+3))
    a('%s:' % Lz2)
    a('v_mul_f32 v%d, 0x%x, v%d\nv_mul_f32 v%d, 0x%x, v%d' % (st, fbits(1/512), st, st+2, fbits(1/512), st+2))
    a('v_fma_f32 v%d, -v%d, v%d, v%d\nv_max_f32 v%d, 0, v%d' % (st+2, st, st, st+2, st+2, st+2))
    a('v_cvt_pk_bf16_f32 v%d, v%d, v%d' % (st+1, st+2, st+4))
    a('v_lshlrev_b32 v%d, 16, v%d\nv_and_b32 v%d, 0xffff0000, v%d' % (st+2, st+1, st+4, st+1))
    a('v_add_f32 v%d, 0x%x, v%d\nv_mul_f32 v%d, 0x%x, v%d' % (st+2, fbits(1e-5), st+2, st+4, fbits(-LOG2E), st+4))
    a('v_cvt_pk_bf16_f32 v%d, v%d, v%d\nv_exp_f32 v%d, v%d' % (st+2, st+2, st+2, st+4, st+4))
    a('v_lshlrev_b32 v%d, 16, v%d\nv_add_f32 v%d, 1.0, v%d' % (st+2, st+2, st+4, st+4))
    a('v_sqrt_f32 v%d, v%d\nv_rcp_f32 v%d, v%d' % (st+2, st+2, st+4, st+4))
    a('v_mov_b32 v%d, s%d\nv_mov_b32 v%d, s%d' % (st+1, sNR, st+3, sNR))
    a('v_cvt_pk_bf16_f32 v%d, v%d, v%d' % (st, st, st+2))
    a('v_cvt_pk_bf16_f32 v%d, v%d, v%d\nv_lshlrev_b32 v%d, 16, v%d\nv_sub_f32 v%d, 1.0, v%d' % (st+4, st+4, st+4, st+4, st+4, st+5, st+4))
    a('v_cvt_pk_bf16_f32 v%d, v%d, v%d' % (st+2, st+4, st+5))
    a('s_lshl_b32 s10, s7, 4\ns_add_u32 s10, s10, 0x%x\nv_lshlrev_b32 v%d, 4, v%d' % (WS_STATS, t+4, vH))
    a('s_mov_b32 exec_lo, 0x80000000\ns_mov_b32 exec_hi, 0x80000000')
    a.vmem('buffer_store_dwordx4 %s, v%d, s[%d:%d], s10 offen sc1' % (vr(st,4), t+4, rWS, rWS+3), 'pub0')
    a('s_mov_b64 exec, -1')
    V.release('xs0', 'xs1', 'gw', 'st', 'fr')
    stamp('T0')

    lam = V.alloc('lam', 2); l8 = V.alloc('l8', 2); l16 = V.alloc('l16c', 2); l128 = V.alloc('l128', 2); l1k = V.alloc('l1k', 2)
    c2 = V.alloc('c2', 2); pc = V.alloc('pc', 2); q0 = V.alloc('q0', 2); q1 = V.alloc('q1', 2)
    def csq(d, s):
        return 'v_mul_f32 v%d, v%d, v%d\nv_mul_f32 v%d, v%d, v%d\nv_fma_f32 v%d, v%d, v%d, -v%d\nv_add_f32 v%d, v%d, v%d' % (t, s+1, s+1, t+1, s, s+1, d, s, s, t, d+1, t+1, t+1)
    def cmul(d, x, y):
        return 'v_mul_f32 v%d, v%d, v%d\nv_mul_f32 v%d, v%d, v%d\nv_fma_f32 v%d, -v%d, v%d, v%d\nv_fma_f32 v%d, v%d, v%d, v%d' % (d, x, y, d+1, x, y+1, d, x+1, y+1, d, d+1, x+1, y, d+1)
    def cfma(d, x, y, z):
        return 'v_fma_f32 v%d, v%d, v%d, v%d\nv_fma_f32 v%d, v%d, v%d, v%d\nv_fma_f32 v%d, -v%d, v%d, v%d\nv_fma_f32 v%d, v%d, v%d, v%d' % (d[0], x, y[0], z[0], d[1], x, y[1], z[1], d[0], x+1, y[1], d[0], d[1], x+1, y[0], d[1])
    a.bg('v_lshlrev_b32 v%d, 16, v%d\nv_lshlrev_b32 v%d, 16, v%d\nv_lshlrev_b32 v%d, 16, v%d' % (lp, lp, lp+1, lp+1, lp+2, lp+2))
    a.bg('v_mul_f32 v%d, 0x%x, v%d\nv_exp_f32 v%d, v%d\nv_mul_f32 v%d, v%d, v%d' % (lp+2, fbits(LOG2E), lp+2, lp+2, lp+2, t+2, lp, lp))
    a.bg('v_cvt_pk_bf16_f32 v%d, v%d, v%d\nv_fma_f32 v%d, v%d, v%d, v%d\nv_lshlrev_b32 v%d, 16, v%d' % (lp+2, lp+2, lp+2, t+2, lp+1, lp+1, t+2, lp+2, lp+2))
    a.bg('v_rcp_f32 v%d, v%d\nv_mul_f32 v%d, v%d, v%d\nv_mul_f32 v%d, v%d, v%d' % (t+2, t+2, t, lp+2, lp, t+1, lp+2, lp+1))
    a.bg('v_mul_f32 v%d, 0x%x, v%d\nv_mul_f32 v%d, 0.15915494, v%d' % (t, fbits(LOG2E), t, t+1, t+1))
    a.bg('v_exp_f32 v%d, v%d\nv_rndne_f32 v%d, v%d\nv_sub_f32 v%d, v%d, v%d\nv_add_f32 v%d, v%d, v%d' % (t, t, t+3, t+1, t+1, t+1, t+3, t+2, t+2, t+2))
    a.bg('v_cos_f32 v%d, v%d\nv_sin_f32 v%d, v%d\nv_mul_f32 v%d, v%d, v%d\nv_mul_f32 v%d, v%d, v%d' % (lam, t+1, lam+1, t+1, lam, lam, t, lam+1, lam+1, t))
    a.bg('v_add_f32 v%d, -1.0, v%d' % (t+3, lam))
    a.bg('v_mul_f32 v%d, v%d, v%d\nv_mul_f32 v%d, v%d, v%d' % (c2, t+3, lp, c2+1, lam+1, lp))
    a.bg('v_fma_f32 v%d, v%d, v%d, v%d\nv_fma_f32 v%d, -v%d, v%d, v%d' % (c2, lam+1, lp+1, c2, c2+1, t+3, lp+1, c2+1))
    a.bg('v_mul_f32 v%d, v%d, v%d\nv_mul_f32 v%d, v%d, v%d' % (c2, c2, t+2, c2+1, c2+1, t+2))
    a.bg(csq(q0, lam), csq(q1, q0), csq(l8, q1), csq(l16, l8), csq(q0, l16), csq(q1, q0), csq(l128, q1))
    a.bg('s_mov_b32 s10, 0\ns_mov_b32 s11, -1\nv_mov_b32 v%d, 1.0\nv_mov_b32 v%d, 0' % (t+2, t+3))
    a.bg('v_cndmask_b32 v%d, v%d, v%d, s[10:11]\nv_cndmask_b32 v%d, v%d, v%d, s[10:11]' % (t+4, t+2, l16, t+5, t+3, l16+1))
    a.bg(lambda: a('s_bitcmp1_b32 s%d, 0\ns_cselect_b64 s[10:11], -1, 0' % sW), lambda: a('s_bitcmp1_b32 s%d, 1\ns_cselect_b64 s[12:13], -1, 0' % sW))
    a.bg('v_cndmask_b32 v%d, v%d, v%d, s[10:11]\nv_cndmask_b32 v%d, v%d, v%d, s[10:11]' % (q0, t+2, q0, q0+1, t+3, q0+1))
    a.bg('v_cndmask_b32 v%d, v%d, v%d, s[12:13]\nv_cndmask_b32 v%d, v%d, v%d, s[12:13]' % (q1, t+2, q1, q1+1, t+3, q1+1))
    a.bg(cmul(t+6, t+4, q0), cmul(pc, t+6, q1))
    a.bg(csq(q0, l128), csq(q1, q0), csq(l1k, q1))
    vb = V.alloc('vb', 48, 2)
    a.bg('s_lshl_b32 s10, s%d, 8\nv_lshl_add_u32 v%d, v%d, 3, s10' % (sW, t+6, vH))
    for k in range(12):
        a.bg('ds_read_b64 %s, v%d offset:%d' % (vr(vb+4*k+2, 2), t+6, MISC+8192+64*(k//4)+16*(k%4)))
    a.bg('@stage')
    for k in range(12):
        b = vb+4*k
        a.bg('v_lshlrev_b32 v%d, 16, v%d\nv_and_b32 v%d, 0xffff0000, v%d\nv_lshlrev_b32 v%d, 16, v%d\nv_and_b32 v%d, 0xffff0000, v%d' % (b, b+2, b+1, b+2, b+2, b+3, b+3, b+3))

    accR = V.alloc('accR', 16, 4); accI = V.alloc('accI', 16, 4); accF = V.alloc('accF', 48, 4)
    AX, AB = 0, 128
    EARR, CSX, CSF = MISC, MISC+4096, MISC+9216
    stages = []
    for n in range(8):
        R = []; M = []
        buf = AB + 32*(n % 2); slot = (n % 3)*SLOT
        for s in range(4):
            R.append('ds_read_b128 %s, v%d offset:%d' % (ar(AX+16*n+4*s, 4), vRdX+s, slot))
            R.append('ds_read_b128 %s, v%d offset:%d' % (ar(buf+8*s, 4), vRdB+s, slot))
            R.append('ds_read_b128 %s, v%d offset:%d' % (ar(buf+8*s+4, 4), vRdB+s, slot+4096))
            for p, acc in enumerate((accR, accI)):
                c = '0' if (n == 0 and s == 0) else vr(acc, 16)
                M.append('v_mfma_f32_32x32x16_bf16 %s, %s, %s, %s' % (vr(acc, 16), ar(AX+16*n+4*s, 4), ar(buf+8*s+4*p, 4), c))
        stages.append(dict(item=n, R=R, M=M))
    for q in range(4):
        for u in range(4):
            R = []; M = []
            k = 4*q+u; buf = AB + 32*(k % 2)
            for s2 in range(2):
                s = 2*u+s2; ks = 8*q+s
                for tt in range(3):
                    f = buf + 12*s2 + 4*tt
                    for hf in range(2):
                        R.append('ds_read_b64_tr_b16 %s, v%d offset:%d' % (ar(f+2*hf, 2), vTr, (16*s+4*hf)*192 + 64*tt))
                    c = '0' if ks == 0 else vr(accF+16*tt, 16)
                    M.append('v_mfma_f32_32x32x16_bf16 %s, %s, %s, %s' % (vr(accF+16*tt, 16), ar(f, 4), ar(AX+4*ks, 4), c))
            stages.append(dict(item=8+q if u == 0 else None, R=R, M=M))
    hooks = {}

    def h1():
        a.bg('v_mov_b32 v%d, 0\nv_mov_b32 v%d, 0\nv_lshlrev_b32 v%d, 3, v0' % (q0, q0+1, q1))
        a.bg('ds_write_b64 v%d, %s offset:%d' % (q1, vr(q0, 2), EARR))
    eA = V.alloc('eA', 2); eB = V.alloc('eB', 2); eT = V.alloc('eT', 4); e16 = V.alloc('e16', 2)
    def pass1():
        cur = [(accR, accI), (accR+1, accI+1)]
        for s in range(1, 8):
            A_ = [];
            for ch in range(2):
                fin = (eA, eB)[ch]
                d = (fin, fin+1) if (7-s) % 2 == 0 else (eT+2*ch, eT+2*ch+1)
                A_.append(cfma(d, lam, cur[ch], (accR+2*s+ch, accI+2*s+ch)).split('\n'))
                cur[ch] = d
            for x, y in zip(*A_): a.bg(x, y)
        a.bg(cfma((e16, e16+1), l8, (eA, eA+1), (eB, eB+1)))
        a.bg('s_lshl_b32 s10, s%d, 9\nv_lshl_add_u32 v%d, v%d, 8, s10\nv_lshl_add_u32 v%d, v%d, 3, v%d' % (sW, eB, vH, eB, vN, eB))
        a.bg('ds_write_b64 v%d, %s offset:%d' % (eB, vr(e16, 2), EARR+7*256))
        a.bg('@bar9')
    ex = V.alloc('ex', 16, 2); S = V.alloc('S', 2); uR = V.alloc('uR', 16, 2)
    def h9():
        for s in range(7): a.bg('ds_read_b64 %s, v%d offset:%d' % (vr(ex+2*s, 2), eB, EARR+256*s))
        a.bg('v_lshlrev_b32 v%d, 2, v%d\nv_and_b32 v%d, 16, v%d\nv_and_b32 v%d, 1, v%d\nv_lshl_add_u32 v%d, v%d, 3, v%d' % (t, vN, t, t, t+1, vN, t, t+1, t))
        a.bg('v_bfe_u32 v%d, v%d, 1, 1\nv_lshrrev_b32 v%d, 3, v%d\nv_lshl_add_u32 v%d, v%d, 1, v%d\nv_add_lshl_u32 v%d, v%d, v%d, 4' % (t+1, vN, t+2, vN, t+1, t+2, t+1, vSa, t, t+1))
        a.bg('v_min_u32 v%d, 47, v%d\nv_lshlrev_b32 v%d, 4, v%d' % (vCa, vL, vCa, vCa))
        a.bg('s_lshl_b32 s10, s%d, 2\ns_add_u32 s10, s10, s%d\ns_lshl_b32 s10, s10, 9\ns_add_u32 s99, s10, 0x%x' % (sI, sW, WS_STATS))
        a.bg('s_lshl_b32 s10, s%d, 2\ns_add_u32 s10, s10, s%d\ns_mul_i32 s10, s10, 3072\ns_add_u32 s100, s10, 0x%x' % (sJ, sW, WS_CSP))
        for s_ in gran_loads(): a.bg(lambda s_=s_: a.vmem(s_, 'gran'))
        a.bg('@stage')
        cur = (ex, ex+1)
        for s in range(1, 7):
            d = (S, S+1) if s % 2 == 0 else (eT, eT+1)
            a.bg(cfma(d, l16, cur, (ex+2*s, ex+2*s+1))); cur = d
        a.bg(cfma((ex, ex+2), l16, (S, S+1), (e16, e16+1)))
        a.bg('v_mov_b32 v%d, s%d\nv_mov_b32 v%d, s%d\nv_lshlrev_b32 v%d, 4, v%d' % (ex+1, sNC, ex+3, sNC, vEa, vN))
        a.bg('s_lshl_b32 s10, s%d, 5\ns_add_u32 s10, s10, s%d\ns_lshl_b32 s10, s10, 9\ns_add_u32 s101, s10, 0x%x\ns_add_u32 s10, s101, %d' % (sJ, sI, WS_EST, 16*512))
        def pub():
            l = a.lab('pe')
            a('s_cmp_lg_u32 s%d, 3\ns_cbranch_scc1 %s\ns_mov_b32 exec_lo, 0' % (sW, l))
            a.vmem('buffer_store_dwordx4 %s, v%d, s[%d:%d], s10 offen sc1' % (vr(ex, 4), vEa, rWS, rWS+3), 'pubE', maybe=True)
            a('s_mov_b32 exec_lo, -1\n%s:' % l)
        a.bg(pub)
        a.bg('v_lshl_add_u32 v%d, v%d, 12, v%d' % (vEa, vH, vEa))
        for k in range(16):
            a.bg('v_mul_f32 v%d, v%d, v%d\nv_fma_f32 v%d, -v%d, v%d, v%d\nv_mul_f32 v%d, -v%d, v%d\nv_fma_f32 v%d, -v%d, v%d, v%d' %
                 (uR+k, c2, accR+k, uR+k, c2+1, accI+k, uR+k, accI+k, c2, accI+k, accI+k, c2+1, accR+k, accI+k))
    vSa = V.alloc('sa'); vCa = V.alloc('ca'); vEa = V.alloc('ea')
    gS = V.alloc('gS', 4, 2); gC = V.alloc('gC', 16, 2)
    def gran_loads():
        return ['buffer_load_dwordx4 %s, v%d, s[%d:%d], s99 offen sc1' % (vr(gS, 4), vSa, rWS, rWS+3)] + \
               ['buffer_load_dwordx4 %s, v%d, s[%d:%d], s100 offen offset:%d sc1' % (vr(gC+4*k, 4), vCa, rWS, rWS+3, 768*k) for k in range(4)]
    def check(loads, tags, tmp):
        def chk():
            o = []
            o.append('v_xor_b32 v%d, s%d, v%d' % (tmp, tags[0][1], tags[0][0]))
            for (r, s_) in tags[1:]:
                o.append('v_xor_b32 v%d, s%d, v%d\nv_or_b32 v%d, v%d, v%d' % (tmp+1, s_, r, tmp, tmp, tmp+1))
            o.append('v_cmp_ne_u32 vcc, 0, v%d' % tmp)
            return '\n'.join(o)
        lr, lb = a.lab('retry'), a.lab('back')
        tailtxt = ['%s:' % lr, 's_sleep 2'] + loads + ['s_waitcnt vmcnt(0)'] + chk().split('\n') + \
                  ['s_add_u32 s%d, s%d, 1' % (sSPIN, sSPIN), 's_cmp_gt_u32 s%d, %d' % (sSPIN, SPIN_MAX), 's_cbranch_scc1 %s' % lb,
                   's_cbranch_vccnz %s' % lr, 's_branch %s' % lb]
        a.tail += [x if x.endswith(':') else '    '+x for x in tailtxt]
        return chk(), (lambda: a('s_cbranch_vccnz %s\n%s:' % (lr, lb)))
    rs = V.alloc('rs', 2); mr = V.alloc('mr')
    def h10():
        a.bg(lambda: a.vm_wait('gran'))
        c, br = check(gran_loads(), [(gS+1, sNR), (gS+3, sNR)] + [(gC+2*k+1, sNC) for k in range(8)], t)
        a.bg(c, br)
        a.bg('v_add_f32 v%d, v%d, v%d\nv_add_f32 v%d, v%d, v%d\nv_add_f32 v%d, v%d, v%d\nv_add_f32 v%d, v%d, v%d' % (gC, gC, gC+4, gC+2, gC+2, gC+6, gC+8, gC+8, gC+12, gC+10, gC+10, gC+14))
        a.bg('v_add_f32 v%d, v%d, v%d\nv_add_f32 v%d, v%d, v%d' % (gC, gC, gC+8, gC+1, gC+2, gC+10))
        a.bg('v_lshrrev_b32 v%d, 1, v%d\ns_mul_i32 s10, s%d, 384\nv_add_u32 v%d, s10, v%d' % (vCa, vCa, sW, vSa, vCa))
        a.bg('ds_write_b64 v%d, %s offset:%d' % (vSa, vr(gC, 2), CSX))
        a.bg('v_and_b32 v%d, 0xffff0000, v%d\nv_and_b32 v%d, 0xffff0000, v%d\nv_rcp_f32 v%d, v%d\nv_max_f32 v%d, 0x%x, v%d' % (rs, gS, rs+1, gS+2, rs, rs, rs+1, fbits(1e-30), rs+1))
        a.bg('v_lshlrev_b32 v%d, 16, v%d\nv_rcp_f32 v%d, v%d\nv_mul_f32 v%d, v%d, v%d' % (mr, gS, rs+1, rs+1, mr, mr, rs))
        a.bg('@bar11')
    def h11():
        for k in range(4): a.bg('ds_read_b64 %s, v%d offset:%d' % (vr(gC+2*k, 2), vCa, CSX+384*k))
        a.bg('@stage')
        a.bg('v_add_f32 v%d, v%d, v%d\nv_add_f32 v%d, v%d, v%d\nv_add_f32 v%d, v%d, v%d\nv_add_f32 v%d, v%d, v%d' % (gC, gC, gC+2, gC+1, gC+1, gC+3, gC+4, gC+4, gC+6, gC+5, gC+5, gC+7))
        a.bg('v_add_f32 v%d, v%d, v%d\nv_add_f32 v%d, v%d, v%d' % (gC, gC, gC+4, gC+1, gC+1, gC+5))
        a.bg('ds_write_b64 v%d, %s offset:%d' % (vSa, vr(gC, 2), CSF))
        a.bg('s_mul_i32 s10, s%d, 384\nv_lshl_add_u32 v%d, v%d, 4, s10' % (sW, vSa, vH))
        for tt in range(3):
            bufr = gC if tt % 2 == 0 else ex
            for g in range(4): a.bg('ds_read_b128 %s, v%d offset:%d' % (vr(bufr+4*g, 4), vSa, CSF + 128*tt + 32*g))
            if tt == 0: continue
            a.bg('@stage')
            for tq in ([0, 1] if tt == 1 else [2]):
                bq = gC if tq % 2 == 0 else ex
                for k in range(16): a.bg('v_fma_f32 v%d, -v%d, v%d, v%d' % (vb+16*tq+k, mr, bq+k, vb+16*tq+k))
    hooks = {1: h1, 9: h9, 10: h10, 11: h11}

    nbg1, nbg2 = cfg.get('nbg1', 4), cfg.get('nbg2', 3)
    prevM = []
    for k, stg in enumerate(stages + [dict(item=None, R=[], M=[])]):
        n = stg['item']
        dma = []
        if n is not None:
            if ('@bar%d' % n) in a.bgq: a.bg_flush('@bar%d' % n)
            a.vm_wait('item%d' % n, lgkm=True)
            a('s_barrier')
            a.bg_release('@bar%d' % n)
            if 1 <= n <= 6: dma = [(kk, s_, n+5) for kk, s_ in issue_item(n+5)]
            if n in (3, 6):
                d = 3*SLOT if n == 3 else -3*SLOT
                for s in range(4):
                    a(('v_add_u32 v%d, %d, v%d' if d > 0 else 'v_subrev_u32 v%d, %d, v%d') % (vRdB+s, abs(d), vRdB+s))
                    a(('v_add_u32 v%d, %d, v%d' if d > 0 else 'v_subrev_u32 v%d, %d, v%d') % (vRdX+s, abs(d), vRdX+s))
            if n > 8: a('v_add_u32 v%d, %d, v%d' % (vTr, SLOT, vTr))
            if n in hooks: hooks[n]()
            stamp('b%d' % n)
        else:
            a('s_waitcnt lgkmcnt(0)')
        a.bg_release('@stage')
        R = list(stg['R'])
        nm = max(1, len(prevM))
        per = -(-len(R)//nm); perd = -(-len(dma)//nm)
        nbg = nbg1 if k < 8 else nbg2
        for mi in range(nm):
            if prevM: a(prevM[mi])
            for _ in range(per):
                if R: a(R.pop(0))
            for _ in range(perd):
                if dma:
                    kk, s_, it = dma.pop(0)
                    if kk == 's': a(s_)
                    else: a.vmem(s_, 'item%d' % it)
            if prevM: a.bg_emit(nbg)
        prevM = stg['M']
        if k == 8: pass1()
    a.bg_flush()
    V.release('rdB', 'rdX', 'tr', 'xs', 'wsrc', 'lp', 'gS', 'sa', 'ca', 'q0', 'q1', 'accR', 'mr', 'eB', 'e16', 'ex', 'gC', 'eT')
    a('s_waitcnt lgkmcnt(0)\ns_barrier')
    stamp('b12')
    gE0 = V.alloc('gE0', 16, 2); gE1 = V.alloc('gE1', 16, 2)
    gE = lambda k: gE0+k if k < 16 else gE1+k-16
    Eloads = ['buffer_load_dwordx4 %s, v%d, s[%d:%d], s101 offen offset:%d sc1' % (vr(gE(4*s), 4), vEa, rWS, rWS+3, 512*s) for s in range(8)]
    for s_ in Eloads: a.vmem(s_, 'E')
    doB = cfg.get('phaseB', True)
    r1 = []
    if doB:
        import genb
        B = genb.setupB(a, V, cfg, locals())
        r1 = B['c_dma']() + B['w_dma'](0, 32768)
    def r1_emit(n):
        while n > 0 and r1:
            k_, s_ = r1.pop(0)
            if k_ == 's': a(s_)
            else: a.vmem(s_, 'r1'); n -= 1
    T = V.alloc('T', 8, 2); Dd = V.alloc('D', 8, 4)
    a('s_add_u32 s10, s%d, 64\ns_lshl_b32 s10, s10, 10\ns_add_u32 s99, s10, s%d' % (sU0, sMT))
    a('s_lshl_b32 s10, s%d, 12\ns_add_u32 s100, s10, s%d' % (sJ, sMT))
    Lskip = a.lab('skip5')
    for b in range(6):
        if b == 5: a('s_cmp_ge_u32 s%d, 6\ns_cbranch_scc1 %s' % (sJ, Lskip))
        if b == 4: a('s_add_u32 s99, s99, 4096')
        A0 = accF+8*b; V0 = vb+8*b; Db = Dd + 4*(b % 2)
        pr = lambda x, q: vr(x+2*q, 2)
        for q in range(4): a('v_pk_fma_f32 %s, %s, %s, %s op_sel_hi:[1,0,1]' % (pr(A0,q), pr(A0,q), vr(rs,2), pr(V0,q)))
        for q in range(4): a('v_pk_mul_f32 %s, %s, %s' % (pr(T,q), pr(A0,q), pr(A0,q)))
        for q in range(4): a('v_pk_fma_f32 %s, %s, s[%d:%d], s[%d:%d] op_sel:[0,1,0] op_sel_hi:[1,1,0]' % (pr(T,q), pr(T,q), sGC, sGC+1, sGC, sGC+1))
        for q in range(4): a('v_pk_mul_f32 %s, %s, %s' % (pr(T,q), pr(T,q), pr(A0,q)))
        for q in range(8):
            a('v_exp_f32 v%d, v%d' % (T+q, T+q))
            if b < 5 and q % 2 == 0: r1_emit(1)
        for q in range(4): a('v_pk_fma_f32 %s, %s, %s, %s op_sel:[0,1,1] op_sel_hi:[1,1,1]' % (pr(T,q), pr(T,q), vr(rs,2), vr(rs,2)))
        for q in range(8):
            a('v_rcp_f32 v%d, v%d' % (T+q, T+q))
            if b < 5 and q % 2 == 0: r1_emit(1)
        for q in range(4): a('v_pk_mul_f32 %s, %s, %s' % (pr(T,q), pr(T,q), pr(A0,q)))
        for q in range(4): a('v_cvt_pk_bf16_f32 v%d, v%d, v%d' % (Db+q, T+2*q, T+2*q+1))
        a.vmem('buffer_store_dwordx4 %s, v%d, s[%d:%d], s99 offen offset:%d sc1' % (vr(Db,4), vL16, rWS, rWS+3, 1024*(b % 4)), 'st', maybe=(b == 5))
    a('%s:' % Lskip)
    stamp('gelu')
    a.vm_wait('E')
    c, br = check(Eloads, [(gE(2*k+1), sNC) for k in range(16)], t)
    a(c); br()
    stamp('Eok')
    cur = (gE0, gE0+2)
    for s in range(1, 8):
        d = (T, T+1) if s % 2 else (T+2, T+3)
        a(cfma(d, l128, cur, (gE(4*s), gE(4*s+2)))); cur = d
    a('v_mov_b32 v%d, v%d\nv_mov_b32 v%d, v%d' % (T+2, T, T+3, T+1))
    a('v_permlane32_swap_b32 v%d, v%d\nv_permlane32_swap_b32 v%d, v%d' % (T, T+2, T+1, T+3))
    a(cfma((T+4, T+5), l1k, (T, T+1), (T+2, T+3)))
    a(cfma((T, T+1), pc, (T+4, T+5), (S, S+1)))
    a(cfma((T+2, T+3), l8, (T, T+1), (eA, eA+1)))
    for ch in range(2):
        x = T+2*ch
        a('v_mul_f32 v%d, v%d, v%d\nv_mul_f32 v%d, -v%d, v%d\nv_fma_f32 v%d, -v%d, v%d, v%d\nv_fma_f32 v%d, -v%d, v%d, v%d' %
          (T+4+ch, c2, x, T+6+ch, c2, x+1, T+4+ch, c2+1, x+1, T+4+ch, T+6+ch, c2+1, x, T+6+ch))
    pR, pI = T+4, T+6
    lm = vr(lam, 2)
    for s in range(8):
        r_, i_ = vr(uR+2*s, 2), vr(accI+2*s, 2)
        a('v_pk_fma_f32 %s, %s, %s, %s op_sel_hi:[0,1,1]' % (r_, lm, vr(pR,2), r_))
        a('v_pk_fma_f32 %s, %s, %s, %s op_sel_hi:[0,1,1]' % (i_, lm, vr(pI,2), i_))
        a('v_pk_fma_f32 %s, %s, %s, %s op_sel:[1,0,0] op_sel_hi:[1,1,1]' % (r_, lm, vr(pI,2), r_))
        a('v_pk_fma_f32 %s, %s, %s, %s op_sel:[1,0,0] op_sel_hi:[1,1,1] neg_lo:[1,0,0] neg_hi:[1,0,0]' % (i_, lm, vr(pR,2), i_))
        pR, pI = uR+2*s, accI+2*s
    for k in range(8): a('v_cvt_pk_bf16_f32 v%d, v%d, v%d' % (gE0+k, uR+2*k, uR+2*k+1))
    for k in range(8): a('v_cvt_pk_bf16_f32 v%d, v%d, v%d' % (gE0+8+k, accI+2*k, accI+2*k+1))
    a('s_lshl_b32 s10, s%d, 12\ns_add_u32 s10, s10, %d' % (sW, MISC))
    a('v_bfe_u32 v%d, v%d, 1, 2\nv_lshlrev_b32 v%d, 1, v%d\nv_xor_b32 v%d, v%d, v%d\nv_lshlrev_b32 v%d, 4, v%d' % (t, vN, t+1, vH, t, t, t+1, t, t))
    a('v_lshl_add_u32 v%d, v%d, 6, v%d\nv_add_u32 v%d, s10, v%d\nv_xor_b32 v%d, 16, v%d' % (t, vN, t, t, t, t+1, t))
    for part in range(2):
        a('ds_write_b128 v%d, %s offset:%d' % (t, vr(gE0+8*part, 4), 2048*part))
        a('ds_write_b128 v%d, %s offset:%d' % (t+1, vr(gE0+8*part+4, 4), 2048*part))
    a('v_and_b32 v%d, 1, v%d\nv_bfe_u32 v%d, v%d, 4, 1\nv_lshl_add_u32 v%d, v%d, 1, v%d' % (t+2, vL, t+3, vL, t+2, t+2, t+3))
    a('v_bfe_u32 v%d, v%d, 3, 1\nv_xor_b32 v%d, v%d, v%d\nv_lshlrev_b32 v%d, 4, v%d' % (t+3, vL, t+2, t+2, t+3, t+2, t+2))
    a('v_bfe_u32 v%d, v%d, 1, 1\nv_lshl_add_u32 v%d, v%d, 3, v%d\nv_lshl_add_u32 v%d, v%d, 6, v%d' % (t+3, vL, t+2, t+3, t+2, t+2, vRp, t+2))
    a('v_add_u32 v%d, s10, v%d\nv_xor_b32 v%d, 32, v%d' % (t+2, t+2, t+3, t+2))
    a('s_waitcnt lgkmcnt(0)')
    for q4 in range(4):
        for hf in range(2):
            a('ds_read_b64_tr_b16 %s, v%d offset:%d' % (vr(gE1+4*q4+2*hf, 2), t+2+hf, (16*q4+4*hf)*64))
    for q4 in range(4):
        a('s_waitcnt lgkmcnt(%d)' % (6-2*q4))
        a.vmem('buffer_store_dwordx4 %s, v%d, s[%d:%d], s100 offen offset:%d sc1' % (vr(gE1+4*q4,4), vL16, rWS, rWS+3, 1024*q4), 'st')
    stamp('hst')
    if doB:
        assert not r1
        a.vm_wait('r1')
        genb.round1_reads(a, B)
        r2 = []
        for pq in range(1, 10): r2 += B['w_dma'](pq, 4096*(pq-1))
        a('s_lshl_b32 s%d, s%d, 12' % (sLB, sW))
        r2 += B['w_dma'](10, MISC, sLB)
        na = cfg.get('r2a', 10)
        a('s_waitcnt lgkmcnt(0)')
        genb.emit(a, r2[:na], 'r2'); B['rest'] = r2[na:]
    a.vm_wait('st')
    a('s_barrier')
    stamp('acked')
    Ld = a.lab('done')
    a('s_cmp_lg_u32 s%d, 0\ns_cbranch_scc1 %s\ns_mov_b64 exec, 1' % (sW, Ld))
    a('s_lshl_b32 s10, s%d, 5\ns_add_u32 s10, s10, s%d\ns_lshl_b32 s10, s10, 2\ns_add_u32 s10, s10, 0x%x\nv_mov_b32 v%d, s%d\nv_mov_b32 v%d, 0' % (sI, sJ, WS_DONE, t, sNR, t+1))
    a.vmem('buffer_store_dword v%d, v%d, s[%d:%d], s10 offen sc1' % (t, t+1, rWS, rWS+3), 'flag', maybe=True)
    l1, l2 = a.lab('n1'), a.lab('n2')
    a('s_cmp_lg_u32 s%d, 0\ns_cbranch_scc1 %s\ns_lshl_b32 s10, s%d, 7\ns_add_u32 s10, s10, 0x%x' % (sJ, l1, sI, WS_NONCE))
    a.vmem('buffer_store_dword v%d, v%d, s[%d:%d], s10 offen' % (t, t+1, rWS, rWS+3), 'flag', maybe=True)
    a('%s:\ns_cmp_lg_u32 s%d, 15\ns_cbranch_scc1 %s\ns_lshl_b32 s10, s%d, 7\ns_add_u32 s10, s10, 0x%x\nv_mov_b32 v%d, s%d' % (l1, sI, l2, sJ, WS_NONCE+0x800, t+2, sNC))
    a.vmem('buffer_store_dword v%d, v%d, s[%d:%d], s10 offen' % (t+2, t+1, rWS, rWS+3), 'flag', maybe=True)
    a('%s:\ns_mov_b64 exec, -1\n%s:' % (l2, Ld))

    if doB:
        V.release('gE0', 'gE1', 'T', 'D', 'accI', 'accF', 'vb', 'uR', 'eA', 'S', 'ea', 'rs', 'lam', 'l8', 'l16c', 'l128', 'l1k', 'c2', 'pc', 'rdC', 'c4', 'bs')
        genb.phaseB(a, V, cfg, locals(), B)
    if stamps:
        stamp('end', real=True)
        a('s_waitcnt lgkmcnt(0)')
        open(cfg['out'].replace('.s', '.names'), 'w').write(' '.join(names))
        le = a.lab('st')
        a('s_cmp_lg_u32 s%d, 0\ns_cbranch_scc1 %s' % (sW, le))
        a('s_lshl_b32 s10, s2, 8\ns_add_u32 s10, s10, 0x%x\nv_lshlrev_b32 v%d, 2, v%d' % (STAMP_OFF, t, vL))
        a('buffer_store_dword v%d, v%d, s[%d:%d], s10 offen' % (vStamp, t, rWS, rWS+3))
        if cfg.get('dbg'):
            sel = [names.index(x) for x in cfg['dbg']]
            a('v_readlane_b32 s10, v%d, 61\nv_readlane_b32 s11, v%d, 63\nv_readlane_b32 s12, v%d, 0\ns_mov_b64 exec, 1\ns_not_b32 s10, s10' % (vStamp, vStamp, vStamp))
            a('v_mov_b32 v%d, 0\nv_mov_b32 v%d, s10\nv_mov_b32 v%d, s11' % (t, t+1, t+2))
            a('global_atomic_umax v%d, v%d, s[48:49]\nglobal_atomic_umax v%d, v%d, s[48:49] offset:4' % (t, t+1, t, t+2))
            a('s_cmp_lg_u32 s2, 100\ns_cbranch_scc1 %s' % le)
            for q, k in enumerate(sel):
                a('v_readlane_b32 s10, v%d, %d\ns_sub_u32 s10, s10, s12\nv_mov_b32 v%d, s10\nglobal_store_dword v%d, v%d, s[48:49] offset:%d' % (vStamp, k, t+1, t, t+1, 8+4*q))
        a('%s:' % le)
    a('L_end:\ns_endpgm')
    body, added = a.finish(cfg.get('verbose', False))
    print('vgpr hi', V.hi, 'nops added', added, 'lines', body.count('\n'), file=sys.stderr)
    k = kernel_text(KNAME, body, 512, accum=256)
    txt = file_text([(KNAME, 256, 256, LDS_BYTES)], [k])
    if not cfg.get('aslist'): txt = txt.replace('@launch kernel=%s ' % KNAME, '@launch ')
    return txt

if __name__ == '__main__':
    import json
    cfg = json.loads(sys.argv[2]) if len(sys.argv) > 2 else {}
    cfg['out'] = sys.argv[1]
    open(sys.argv[1], 'w').write(build(cfg))
```
